```python
import torch

def _softmax(x, axis=-1):
    return torch.softmax(x, dim=axis)
def _gelu(x):
    return torch.nn.functional.gelu(x, approximate="tanh")
def _silu(x):
    return torch.nn.functional.silu(x)
def _sigmoid(x):
    return torch.sigmoid(x)
def _layernorm(x, axis=-1, eps=1e-5):
    m = x.mean(dim=axis, keepdim=True)
    v = x.var(dim=axis, keepdim=True, unbiased=False)
    return (x - m) / torch.sqrt(v + eps)
def _scatter_add(tgt, idx, src, axis=0):
    return tgt.clone().index_add_(axis, idx, src)
def _segment_sum(src, seg, n):
    out = torch.zeros((n,) + src.shape[1:], dtype=src.dtype)
    return out.index_add_(0, seg, src)
def _pad(x, pw):
    flat = tuple(v for pair in reversed(pw) for v in pair)
    return torch.nn.functional.pad(x, flat)

kernel_name = 'concat_heads__linear_kernel_hedgehog__ssm_conv_s4d__prompt'

def setup_inputs():

    _w = (lambda a: (lambda t: t.to(torch.bfloat16) if t.is_floating_point() else t)(torch.as_tensor(a)))
    def _A_setup():
        B, S, D, H = 1, 2048, 576, 32
        Dh = D // H
        return {
            "x": _w((lambda *s: torch.randn(*s, dtype=torch.bfloat16) * 0.4)(B, S, D)),
            "wqkv": _w((lambda *s: torch.randn(*s, dtype=torch.bfloat16) * 0.4)(D, 3 * D)),
            "w_phi": _w((lambda *s: torch.randn(*s, dtype=torch.bfloat16) * 0.4)(H, Dh, Dh) * (Dh ** -0.5)),
            "wo": _w((lambda *s: torch.randn(*s, dtype=torch.bfloat16) * 0.05)(D, D)),
        }
    _A_in = _A_setup()

    def _B_setup():
        Bsz, L, D, N = 1, 2048, 576, 128
        return {
            "u": _w((lambda *s: torch.randn(*s, dtype=torch.bfloat16) * 0.05)(Bsz, L, D)),
            "log_A_real": _w((lambda *s: torch.randn(*s, dtype=torch.bfloat16) * 3.2)(D, N) * 0.5),
            "A_imag": _w((lambda *s: torch.randn(*s, dtype=torch.bfloat16) * 0.2)(D, N) * 3.14),
            "C_real": _w((lambda *s: torch.randn(*s, dtype=torch.bfloat16) * 3.2)(D, N) / N ** 0.5),
            "C_imag": _w((lambda *s: torch.randn(*s, dtype=torch.bfloat16) * 3.2)(D, N) / N ** 0.5),
            "log_dt": _w((lambda *s: torch.randn(*s, dtype=torch.bfloat16) * 0.2)(D) * 0.5 - 4.0),
            "D_skip": _w((lambda *s: torch.randn(*s, dtype=torch.bfloat16) * 0.4)(D)),
        }
    _B_in = _B_setup()

    return {
        "A_x": _A_in["x"],
        "A_wqkv": _A_in["wqkv"],
        "A_w_phi": _A_in["w_phi"],
        "A_wo": _A_in["wo"],
        "B_u": _B_in["u"],
        "B_log_A_real": _B_in["log_A_real"],
        "B_A_imag": _B_in["A_imag"],
        "B_C_real": _B_in["C_real"],
        "B_C_imag": _B_in["C_imag"],
        "B_log_dt": _B_in["log_dt"],
        "B_D_skip": _B_in["D_skip"],
    }

def reference(A_x, A_wqkv, A_w_phi, A_wo, B_u, B_log_A_real, B_A_imag, B_C_real, B_C_imag, B_log_dt, B_D_skip):
    def _A_ref(x, wqkv, w_phi, wo):
        B, S, D = x.shape
        H = 32; Dh = D // H
        qkv = (lambda x, *d: x.permute(*d))((x @ wqkv).reshape(B, S, 3, H, Dh), 2, 0, 3, 1, 4)
        q, k, v = qkv[0], qkv[1], qkv[2]
        pq = torch.einsum("bhsd,hdf->bhsf", q, w_phi)
        pk = torch.einsum("bhsd,hdf->bhsf", k, w_phi)
        phi_q = torch.concatenate([_softmax(pq, axis=-1), _softmax(-pq, axis=-1)], axis=-1)
        phi_k = torch.concatenate([_softmax(pk, axis=-1), _softmax(-pk, axis=-1)], axis=-1)
        kv = torch.einsum("bhsf,bhsd->bhfd", phi_k, v)
        z  = torch.einsum("bhsf->bhf", phi_k)
        num = torch.einsum("bhqf,bhfd->bhqd", phi_q, kv)
        den = torch.einsum("bhqf,bhf->bhq", phi_q, z)[..., None] + 1e-6
        o = num / den
        return (lambda x, *d: x.permute(*d))(o, 0, 2, 1, 3).reshape(B, S, D) @ wo

    def _B_ref(u, log_A_real, A_imag, C_real, C_imag, log_dt, D_skip):
        L = u.shape[1]
        dt = torch.exp(log_dt)
        A = -torch.exp(log_A_real) + 1j * A_imag
        C = (C_real + 1j * C_imag) * dt[:, None]
        pos = (lambda x, dt: x.to(dt))(torch.arange(L), log_dt.dtype)
        P = torch.exp((A * dt[:, None])[:, :, None] * pos[None, None, :])
        K = 2.0 * torch.einsum("dn,dnl->dl", C, P).real
        L2 = 2 * L
        u_t = (lambda x, *d: x.permute(*d))(u, 0, 2, 1)
        Kf = (lambda x, *a, **k: torch.fft.rfft(x.float(), *a, **k))(K, L2)
        Uf = (lambda x, *a, **k: torch.fft.rfft(x.float(), *a, **k))(u_t, L2)
        y = (lambda x, *a, **k: torch.fft.irfft(x, *a, **k).to(torch.bfloat16))(Uf * Kf[None, :, :], L2)[:, :, :L]
        y = (lambda x, *d: x.permute(*d))(y, 0, 2, 1)
        return y + u * D_skip[None, None, :]

    a = _A_ref(A_x, A_wqkv, A_w_phi, A_wo)
    b = _B_ref(B_u, B_log_A_real, B_A_imag, B_C_real, B_C_imag, B_log_dt, B_D_skip)
    return torch.concatenate([a, b], axis=-1)
```

```python
PARAMS = dict(x=0, wqkv=8, wphi=16, wo=24, u=32, lar=40, aim=48, cre=56, cim=64, ldt=72, dsk=80, out=88, dbg=96, ws=104)
SIZES = dict(x=2048*576*2, wqkv=576*1728*2, wphi=32*18*18*2, wo=576*576*2, u=2048*576*2, lar=576*128*2, aim=576*128*2,
             cre=576*128*2, cim=576*128*2, ldt=576*2, dsk=576*2, out=2048*1152*2, dbg=256, ws=268435456)

class Asm:
    _n = 0
    def __init__(self):
        Asm._n += 1
        self.uid = Asm._n
        self.lines = []
        self.nlabel = 0
    def __call__(self, s=""):
        for l in s.strip("\n").split("\n"):
            self.lines.append(l)
    def label(self, base="L"):
        self.nlabel += 1
        return f"{base}_{self.uid}_{self.nlabel}"
    def text(self):
        return "\n".join(self.lines) + "\n"

def srd(a, sreg, name, nbytes=None, off=0):
    a(f"s_load_dwordx2 s[{sreg}:{sreg+1}], s[0:1], {PARAMS[name]}")
    a("s_waitcnt lgkmcnt(0)")
    if off:
        a(f"s_add_u32 s{sreg}, s{sreg}, {off}")
        a(f"s_addc_u32 s{sreg+1}, s{sreg+1}, 0")
    a(f"s_and_b32 s{sreg+1}, s{sreg+1}, 0xffff")
    a(f"s_mov_b32 s{sreg+2}, {nbytes if nbytes is not None else SIZES[name]}")
    a(f"s_mov_b32 s{sreg+3}, 0x20000")

def kernel_text(name, body, vgpr, sgpr=102, agpr=0):
    acc = (vgpr + 3) // 4 * 4
    code = f""".globl {name}
.p2align 8
.type {name},@function
{name}:
{body}
s_endpgm
"""
    desc = f""".amdhsa_kernel {name}
  .amdhsa_next_free_vgpr {acc + agpr if agpr else vgpr}
  .amdhsa_next_free_sgpr {sgpr}
  .amdhsa_accum_offset {acc}
  .amdhsa_group_segment_fixed_size 0
  .amdhsa_kernarg_size 112
  .amdhsa_user_sgpr_count 2
  .amdhsa_user_sgpr_kernarg_segment_ptr 1
  .amdhsa_system_sgpr_workgroup_id_x 1
  .amdhsa_float_denorm_mode_32 3
.end_amdhsa_kernel
"""
    return code, desc

def program(kernels, header_comment=""):
    out = header_comment
    for k in kernels:
        out += f"; @launch kernel={k['name']} grid=({k['grid']},1,1) block=({k['block']},1,1) lds={k.get('lds',0)}\n"
    out += '.amdgcn_target "amdgcn-amd-amdhsa--gfx950"\n.text\n'
    descs = ""
    seen = set()
    for k in kernels:
        if k["name"] in seen: continue
        seen.add(k["name"])
        c, d = kernel_text(k["name"], k["body"], k["vgpr"], k.get("sgpr", 102), k.get("agpr", 0))
        out += c
        descs += ".p2align 6\n" + d
    out += '.section .rodata,"a"\n' + descs
    return out
```

```python
import sys
sys.path.insert(0, "work")
from asmlib import *
QKV, PHI, KVZ, OO, KT = 0, 16 << 20, 48 << 20, 50 << 20, 64 << 20
WSB = 128 << 20
def prolog(a, n):
    a(f"s_cmp_ge_u32 s2, {n}\ns_cbranch_scc1 Lend_{a.uid}")
def epilog(a):
    a(f"Lend_{a.uid}:")
def divmod_s(a, d, q, r, src="s2"):
    m = (2**32 + d - 1) // d
    a(f"s_mov_b32 {r}, {m}\ns_mul_hi_u32 {q}, {src}, {r}\ns_mul_i32 {r}, {q}, {d}\ns_sub_u32 {r}, {src}, {r}")
def bf(a, v):
    a(f"v_lshlrev_b32 {v}, 16, {v}")

def k_gemm(name, nwg_per_row, ncols, A, Afp32, Aoff, Wname, wpitch, dst, dstoff, dpitch, dbf16):
    a = Asm(); N = 2048 * nwg_per_row
    prolog(a, N)
    if Afp32: srd(a, 8, "ws", WSB)
    else: srd(a, 8, A)
    srd(a, 12, Wname)
    if dbf16: srd(a, 16, dst)
    else: srd(a, 16, "ws", WSB)
    divmod_s(a, nwg_per_row, "s4", "s5")
    esz = 4 if Afp32 else 2
    a(f"""s_lshl_b32 s5, s5, 8
v_add_u32 v1, s5, v0
v_cmp_gt_u32 vcc, {ncols}, v1
s_and_saveexec_b64 s[20:21], vcc
s_cbranch_execz Lend_{a.uid}
s_mul_i32 s6, s4, {576*esz}
s_add_u32 s6, s6, {Aoff}
v_lshlrev_b32 v2, 1, v1
v_mov_b32 v3, 0
v_mov_b32 v4, 0
s_mov_b32 s7, 0
s_mov_b32 s22, 0
Lk_{a.uid}:""")
    for i in range(8):
        if Afp32: a(f"buffer_load_dword v{10+i}, v4, s[8:11], s6 offen offset:{i*4}")
        else: a(f"buffer_load_ushort v{10+i}, v4, s[8:11], s6 offen offset:{i*2}")
        a(f"s_add_u32 s23, s22, {i*wpitch}")
        a(f"buffer_load_ushort v{20+i}, v2, s[12:15], s23 offen")
    a("s_waitcnt vmcnt(0)")
    for i in range(8):
        if not Afp32: bf(a, f"v{10+i}")
        bf(a, f"v{20+i}")
        a(f"v_fmac_f32 v3, v{10+i}, v{20+i}")
    a(f"""s_add_u32 s6, s6, {8*esz}
s_add_u32 s22, s22, {8*wpitch}
s_add_u32 s7, s7, 8
s_cmp_lt_u32 s7, 576
s_cbranch_scc1 Lk_{a.uid}
s_mul_i32 s6, s4, {dpitch}
s_add_u32 s6, s6, {dstoff}""")
    if dbf16:
        a("v_cvt_pk_bf16_f32 v3, v3, v3\nbuffer_store_short v3, v2, s[16:19], s6 offen")
    else:
        a("v_lshlrev_b32 v2, 2, v1\nbuffer_store_dword v3, v2, s[16:19], s6 offen")
    epilog(a)
    return dict(name=name, body=a.text(), grid=N, block=256, vgpr=32)

def softmax18(a, src, dst, sign, tmp):
    neg = "-" if sign < 0 else ""
    a(f"v_max_f32 v{tmp}, {neg}v{src}, {neg}v{src+1}" .replace("v_max_f32", "v_max_f32_e64"))
    for i in range(2, 18): a(f"v_max_f32_e64 v{tmp}, v{tmp}, {neg}v{src+i}")
    a(f"v_mov_b32 v{tmp+1}, 0x3fb8aa3b")
    a(f"v_mov_b32 v{tmp+2}, 0")
    for i in range(18):
        a(f"v_sub_f32_e64 v{dst+i}, {neg}v{src+i}, v{tmp}")
        a(f"v_mul_f32 v{dst+i}, v{tmp+1}, v{dst+i}")
        a(f"v_exp_f32 v{dst+i}, v{dst+i}")
        a("s_nop 0")
        a(f"v_add_f32 v{tmp+2}, v{tmp+2}, v{dst+i}")
    a(f"v_rcp_f32 v{tmp+2}, v{tmp+2}\ns_nop 0")
    for i in range(18): a(f"v_mul_f32 v{dst+i}, v{tmp+2}, v{dst+i}")

def k_phi():
    a = Asm(); N = 512
    prolog(a, N)
    srd(a, 8, "ws", WSB); srd(a, 12, "wphi")
    a(f"""s_lshl_b32 s4, s2, 8
v_add_u32 v1, s4, v0
v_and_b32 v2, 31, v1            ; h
v_lshrrev_b32 v3, 5, v1
v_and_b32 v3, 2047, v3          ; s
v_lshrrev_b32 v4, 16, v1        ; qk
v_mul_u32_u24 v5, 6912, v3      ; s*1728*4
v_mul_u32_u24 v6, 2304, v4      ; qk*576*4
v_mul_u32_u24 v7, 72, v2        ; h*18*4
v_add3_u32 v5, v5, v6, v7
v_mul_u32_u24 v6, 648, v2""")
    for d in range(18): a(f"buffer_load_dword v{10+d}, v5, s[8:11], 0 offen offset:{QKV + d*4}")
    for f in range(18): a(f"v_mov_b32 v{30+f}, 0")
    for d in range(18):
        for f in range(18): a(f"buffer_load_ushort v{50+f}, v6, s[12:15], 0 offen offset:{(d*18+f)*2}")
        a("s_waitcnt vmcnt(0)")
        for f in range(18):
            bf(a, f"v{50+f}")
            a(f"v_fmac_f32 v{30+f}, v{10+d}, v{50+f}")
    softmax18(a, 30, 50, 1, 8)
    softmax18(a, 30, 68, -1, 8)
    a(f"""v_mul_u32_u24 v5, 144, v1       ; gid*36*4
s_mov_b32 s4, {PHI}""")
    for f in range(36): a(f"buffer_store_dword v{50+f}, v5, s[8:11], s4 offen offset:{f*4}")
    epilog(a)
    return dict(name="phi_kernel", body=a.text(), grid=N, block=256, vgpr=96)

def k_kvz():
    a = Asm(); N = 86
    prolog(a, N)
    srd(a, 8, "ws", WSB)
    a(f"""s_lshl_b32 s4, s2, 8
v_add_u32 v1, s4, v0            ; gid = (h*36+f)*19 + d
v_cmp_gt_u32 vcc, 21888, v1
s_and_saveexec_b64 s[20:21], vcc
s_cbranch_execz Lend_{a.uid}
s_mov_b32 s5, {(2**32+18)//19}
v_mul_hi_u32 v2, s5, v1         ; hf
v_mul_u32_u24 v3, 19, v2
v_sub_u32 v3, v1, v3            ; d
s_mov_b32 s5, {(2**32+35)//36}
v_mul_hi_u32 v4, s5, v2         ; h
v_lshlrev_b32 v5, 2, v2
v_mul_u32_u24 v6, 72, v4
v_lshlrev_b32 v7, 2, v3
v_add_u32 v6, v6, v7
v_cmp_eq_u32 s[22:23], 18, v3
v_mov_b32 v8, 0
v_mov_b32 v20, 1.0
s_mov_b32 s6, {PHI + 2048*32*36*4}
s_mov_b32 s7, {QKV + 1152*4}
s_mov_b32 s24, 0
Lk_{a.uid}:""")
    for i in range(4):
        a(f"s_add_u32 s25, s6, {i*4608}\nbuffer_load_dword v{10+i}, v5, s[8:11], s25 offen")
        a(f"s_add_u32 s25, s7, {i*6912}\nbuffer_load_dword v{14+i}, v6, s[8:11], s25 offen")
    a("s_waitcnt vmcnt(0)")
    for i in range(4):
        a(f"v_cndmask_b32 v{14+i}, v{14+i}, v20, s[22:23]\nv_fmac_f32 v8, v{10+i}, v{14+i}")
    a(f"""s_add_u32 s6, s6, {4*4608}
s_add_u32 s7, s7, {4*6912}
s_add_u32 s24, s24, 4
s_cmp_lt_u32 s24, 2048
s_cbranch_scc1 Lk_{a.uid}
v_lshlrev_b32 v1, 2, v1
s_mov_b32 s6, {KVZ}
buffer_store_dword v8, v1, s[8:11], s6 offen""")
    epilog(a)
    return dict(name="kvz_kernel", body=a.text(), grid=N, block=256, vgpr=32)

def k_o():
    a = Asm(); N = 256
    prolog(a, N)
    srd(a, 8, "ws", WSB)
    a(f"""s_lshl_b32 s4, s2, 8
v_add_u32 v1, s4, v0            ; gid = s*32+h
v_and_b32 v2, 31, v1
v_mul_u32_u24 v5, 144, v1
v_mul_u32_u24 v6, {36*19*4}, v2
s_mov_b32 s4, {PHI}
s_mov_b32 s5, {KVZ}""")
    for f in range(36): a(f"buffer_load_dword v{10+f}, v5, s[8:11], s4 offen offset:{f*4}")
    for d in range(19): a(f"v_mov_b32 v{50+d}, 0")
    for f in range(36):
        for d in range(19): a(f"buffer_load_dword v{70+d}, v6, s[8:11], s5 offen offset:{(f*19+d)*4}")
        a("s_waitcnt vmcnt(0)")
        for d in range(19): a(f"v_fmac_f32 v{50+d}, v{10+f}, v{70+d}")
    a("v_add_f32 v68, 0x358637bd, v68\nv_rcp_f32 v68, v68\ns_nop 0")
    a(f"v_mul_u32_u24 v5, 72, v1\ns_mov_b32 s4, {OO}")
    for d in range(18):
        a(f"v_mul_f32 v{50+d}, v68, v{50+d}\nbuffer_store_dword v{50+d}, v5, s[8:11], s4 offen offset:{d*4}")
    epilog(a)
    return dict(name="o_kernel", body=a.text(), grid=N, block=256, vgpr=96)

def k_K():
    a = Asm(); N = 576 * 8
    prolog(a, N)
    srd(a, 8, "ws", WSB); srd(a, 12, "lar"); srd(a, 16, "aim"); srd(a, 24, "cre"); srd(a, 28, "cim"); srd(a, 32, "ldt")
    a(f"""s_lshr_b32 s4, s2, 3            ; d
s_and_b32 s5, s2, 7
s_lshl_b32 s5, s5, 8
v_add_u32 v1, s5, v0            ; l
v_cvt_f32_u32 v2, v1
v_cvt_pk_bf16_f32 v2, v2, v2
v_lshlrev_b32 v2, 16, v2
s_lshl_b32 s6, s4, 1
v_mov_b32 v3, s6
buffer_load_ushort v3, v3, s[32:35], 0 offen
s_waitcnt vmcnt(0)
v_lshlrev_b32 v3, 16, v3
v_mul_f32 v3, 0x3fb8aa3b, v3
v_exp_f32 v3, v3
s_nop 0
v_cvt_pk_bf16_f32 v3, v3, v3
v_lshlrev_b32 v3, 16, v3        ; dt
v_mov_b32 v4, 0
s_lshl_b32 s6, s4, 8
v_mov_b32 v5, s6
s_mov_b32 s7, 0
Lk_{a.uid}:
buffer_load_ushort v10, v5, s[12:15], s7 offen
buffer_load_ushort v11, v5, s[16:19], s7 offen
buffer_load_ushort v12, v5, s[24:27], s7 offen
buffer_load_ushort v13, v5, s[28:31], s7 offen
s_waitcnt vmcnt(0)
v_lshlrev_b32 v10, 16, v10
v_lshlrev_b32 v11, 16, v11
v_lshlrev_b32 v12, 16, v12
v_lshlrev_b32 v13, 16, v13
v_mul_f32 v10, 0x3fb8aa3b, v10
v_exp_f32 v10, v10
s_nop 0
v_cvt_pk_bf16_f32 v10, v10, v10
v_lshlrev_b32 v10, 16, v10
v_mul_f32 v10, v10, v3          ; *dt
v_mul_f32 v11, v11, v3
v_mul_f32 v10, v10, v2          ; *pos
v_mul_f32 v11, v11, v2
v_mul_f32 v10, 0xbfb8aa3b, v10
v_exp_f32 v10, v10
v_mul_f32 v11, 0.15915494, v11
v_fract_f32 v11, v11
v_cos_f32 v14, v11
v_sin_f32 v15, v11
s_nop 0
v_mul_f32 v14, v14, v12
v_fma_f32 v14, -v15, v13, v14
v_mul_f32 v14, v14, v10
v_fmac_f32 v4, v14, v3
s_add_u32 s7, s7, 2
s_cmp_lt_u32 s7, 256
s_cbranch_scc1 Lk_{a.uid}
v_add_f32 v4, v4, v4
v_mul_u32_u24 v6, 2304, v1
s_lshl_b32 s6, s4, 2
s_add_u32 s6, s6, {KT}
buffer_store_dword v4, v6, s[8:11], s6 offen""")
    epilog(a)
    return dict(name="kgen_kernel", body=a.text(), grid=N, block=256, vgpr=32)

def k_y():
    a = Asm(); N = 2048 * 3
    prolog(a, N)
    srd(a, 8, "ws", WSB); srd(a, 12, "u"); srd(a, 16, "out"); srd(a, 24, "dsk")
    divmod_s(a, 3, "s4", "s5")
    a(f"""s_lshl_b32 s5, s5, 8
v_add_u32 v1, s5, v0            ; d
v_cmp_gt_u32 vcc, 576, v1
s_and_saveexec_b64 s[20:21], vcc
s_cbranch_execz Lend_{a.uid}
v_lshlrev_b32 v2, 2, v1
v_lshlrev_b32 v3, 1, v1
v_mov_b32 v4, 0
s_mov_b32 s6, {KT}
s_mul_i32 s7, s4, 1152
s_mov_b32 s22, s7
s_mov_b32 s23, 0
Lk_{a.uid}:
buffer_load_dword v10, v2, s[8:11], s6 offen
buffer_load_ushort v11, v3, s[12:15], s7 offen
s_waitcnt vmcnt(0)
v_lshlrev_b32 v11, 16, v11
v_fmac_f32 v4, v10, v11
s_add_u32 s6, s6, 2304
s_sub_u32 s7, s7, 1152
s_add_u32 s23, s23, 1
s_cmp_le_u32 s23, s4
s_cbranch_scc1 Lk_{a.uid}
buffer_load_ushort v11, v3, s[12:15], s22 offen
buffer_load_ushort v12, v3, s[24:27], 0 offen
s_waitcnt vmcnt(0)
v_lshlrev_b32 v11, 16, v11
v_lshlrev_b32 v12, 16, v12
v_mul_f32 v11, v11, v12
v_cvt_pk_bf16_f32 v11, v11, v4
v_and_b32 v4, 0xffff0000, v11
v_lshlrev_b32 v11, 16, v11
v_add_f32 v4, v4, v11
v_cvt_pk_bf16_f32 v4, v4, v4
s_mul_i32 s6, s4, 2304
s_add_u32 s6, s6, 1152
buffer_store_short v4, v3, s[16:19], s6 offen""")
    epilog(a)
    return dict(name="conv_kernel", body=a.text(), grid=N, block=256, vgpr=32)

def k_empty(i):
    return dict(name=f"empty{i}_kernel", body="s_nop 0", grid=256, block=256, vgpr=32)

ks = [k_gemm("qkv_kernel", 7, 1728, "x", False, 0, "wqkv", 3456, "ws", QKV, 6912, False),
      k_phi(), k_kvz(), k_o(),
      k_gemm("wo_kernel", 3, 576, "ws", True, OO, "wo", 1152, "out", 0, 2304, True),
      k_K(), k_y()]
nempty = int(sys.argv[2]) if len(sys.argv) > 2 else 0
ks += [k_empty(0) for i in range(nempty)]
open(sys.argv[1], "w").write(program(ks, "; naive multi-kernel version\n"))
```

```python
class Prog:
    uid = 0
    def __init__(self):
        self.lines = []
        self.vmq = []
    def __call__(self, s):
        for l in s.strip("\n").split("\n"):
            l = l.strip()
            if l: self.lines.append(l)
    def vm(self, text, tag=None):
        self(text)
        self.vmq.append(tag)
    def vmwait(self, tags):
        if not isinstance(tags, (list, tuple, set)): tags = [tags]
        idx = -1
        for i, t in enumerate(self.vmq):
            if t in tags: idx = i
        if idx < 0: return
        n = len(self.vmq) - 1 - idx
        self(f"s_waitcnt vmcnt({min(n, 63)})")
    def vmall(self):
        self("s_waitcnt vmcnt(0)")
    @staticmethod
    def label(base="L"):
        Prog.uid += 1
        return f"{base}_{Prog.uid}"
    def text(self):
        return "\n".join(self.lines) + "\n"

COST = {"v_exp": 9, "v_rcp": 9, "v_sin": 9, "v_cos": 9, "v_log": 9, "v_permlane": 9, "v_mfma_f32_32": 32, "v_mfma_f32_16": 16,
        "ds_": 6, "s_waitcnt": 20, "s_nop": 4, "buffer_": 30, "global_": 30, "v_": 4, "s_": 1}
def cost(text):
    c = 0
    for l in text.strip("\n").split("\n"):
        l = l.strip()
        for k, v in COST.items():
            if l.startswith(k):
                c += v
                break
    return c

class Side:
    def __init__(self, fine=True):
        self.items = []
        self.fine = fine
        self.dsq = []
    def __call__(self, s):
        if not self.fine:
            self.items.append(("i", s)); return
        for l in s.strip("\n").split("\n"):
            l = l.strip()
            if l: self.items.append(("i", l))
    def atomic(self, s):
        self.items.append(("i", s))
    def vm(self, text, tag=None):
        self.items.append(("vm", text, tag))
    def vmwait(self, tags):
        self.items.append(("vmwait", tags))
    def brk(self):
        self.items.append(("brk",))
    def ds(self, text, tag=None):
        self.items.append(("i", text))
        self.dsq.append(tag)
    def dswait(self, tags):
        if not isinstance(tags, (list, set)): tags = [tags]
        idx = -1
        for i, t in enumerate(self.dsq):
            if t in tags: idx = i
        assert idx >= 0
        n = len(self.dsq) - 1 - idx
        self.items.append(("i", f"s_waitcnt lgkmcnt({min(n, 15)})"))
    def total(self):
        return sum(cost(it[1]) for it in self.items if it[0] in ("i", "vm"))
    def ninstr(self):
        return sum(len([l for l in it[1].split("\n") if l.strip()]) for it in self.items if it[0] in ("i", "vm"))
    def blocks(self):
        if self.fine:
            return [[it] for it in self.items if it[0] != "brk"]
        out, cur = [], []
        for it in self.items:
            if it[0] == "brk":
                if cur: out.append(cur)
                cur = []
            else:
                cur.append(it)
        if cur: out.append(cur)
        return out
    def split(self, n, weights=None):
        bl = self.blocks()
        tot = self.total()
        weights = weights or [1] * n
        wsum = sum(weights)
        res = [[] for _ in range(n)]
        acc, k = 0, 0
        lim = tot * weights[0] / wsum
        for b in bl:
            c = sum(cost(it[1]) for it in b if it[0] in ("i", "vm"))
            while k < n - 1 and acc + c / 2 > lim:
                k += 1
                lim += tot * weights[k] / wsum
            res[k].extend(b)
            acc += c
        return res

def merge(*streams):
    out = []
    pos = [0] * len(streams)
    n = [len(x) for x in streams]
    while any(pos[i] < n[i] for i in range(len(streams))):
        best = min((i for i in range(len(streams)) if pos[i] < n[i]), key=lambda i: (pos[i] + 0.5) / n[i])
        out.append(streams[best][pos[best]]); pos[best] += 1
    return out

class Str:
    def __init__(self): self.l = []
    def __call__(self, s):
        for x in s.strip("\n").split("\n"):
            x = x.strip()
            if x: self.l.append(("i", x))
    def ds(self, text, tag=None): self.l.append(("ds", text, tag))
    def dswait(self, tag): self.l.append(("dsw", tag))
    def vm(self, text, tag=None): self.l.append(("vm", text, tag))
    def vmwait(self, tag): self.l.append(("vmwait", tag))
    def add(self, items): self.l.extend(items)

def resolve(items, side):
    q = []
    for it in items:
        if it[0] == "ds":
            side(it[1]); q.append(it[2])
        elif it[0] == "dsw":
            idx = max(i for i, t in enumerate(q) if t == it[1])
            side(f"s_waitcnt lgkmcnt({min(len(q) - 1 - idx, 15)})")
        elif it[0] == "i": side(it[1])
        elif it[0] == "vm": side.vm(it[1], it[2])
        elif it[0] == "vmwait": side.vmwait(it[1])

def emit_items(p, items):
    for it in items:
        if it[0] == "i": p(it[1])
        elif it[0] == "vm": p.vm(it[1], it[2])
        elif it[0] == "vmwait": p.vmwait(it[1])

KNAME = "concat_heads__linear_kernel_hedgehog__ssm_conv_s4d__prompt_kernel"

def kernel_code(name, body):
    return f".globl {name}\n.p2align 8\n.type {name},@function\n{name}:\n{body}s_endpgm\n"

def kernel_desc(name, vgpr, sgpr=102):
    acc = (vgpr + 3) // 4 * 4
    return f""".p2align 6
.amdhsa_kernel {name}
  .amdhsa_next_free_vgpr {vgpr}
  .amdhsa_next_free_sgpr {sgpr}
  .amdhsa_accum_offset {acc}
  .amdhsa_group_segment_fixed_size 0
  .amdhsa_kernarg_size 112
  .amdhsa_user_sgpr_count 2
  .amdhsa_user_sgpr_kernarg_segment_ptr 1
  .amdhsa_system_sgpr_workgroup_id_x 1
  .amdhsa_float_denorm_mode_32 3
.end_amdhsa_kernel
"""

def program(kernels, single=False):
    out = ""
    if single:
        k = kernels[0]
        out += f"; @launch grid=({k['grid']},1,1) block=({k['block']},1,1) lds={k['lds']}\n"
    else:
        for k in kernels:
            out += f"; @launch kernel={k['name']} grid=({k['grid']},1,1) block=({k['block']},1,1) lds={k['lds']}\n"
    out += '.amdgcn_target "amdgcn-amd-amdhsa--gfx950"\n.text\n'
    for k in kernels: out += kernel_code(k["name"], k["body"])
    out += '.section .rodata,"a"\n'
    for k in kernels: out += kernel_desc(k["name"], k["vgpr"], k.get("sgpr", 102))
    return out
```

```python
from dsl import *

XB = 0
RB = 73728
RING = 336
PK = RB + RING * 144
PKP = 328
VB = PK + 64 * PKP
VP = 200
KGS = PK + 8192
KROW = 272
KG_UNIT = 17 * KROW
LDS_END = max(KGS + 6 * KG_UNIT, VB + 64 * VP, PK + 4 * 9216)
assert LDS_END >= VB + 64 * VP and LDS_END <= 163840

WS_PHIQ = 0
WS_PART = 0x500000
WS_KVZ = 0x700000
WS_UT = 0x800000
WS_KR = 0xB00000
KRP = 4112
WS_YT = 0xE00000
WS_STAMP = 0x7800000
SEG = [1152, 0, 2304]

S_X, S_W, S_PHI, S_WS = 8, 12, 16, 20
S_WAVE, S_TT, S_HG, S_M0W, S_SO, S_J, S_I = 24, 25, 26, 27, 28, 29, 30
S_T0, S_T1, S_T2 = 31, 32, 33
S_MASK63 = 34
S_STAMP = 48
NSTAMP = 27
V_LANE, V_XOFF, V_WOFF, V_T = 1, 2, 3, 4
V_XA, V_XA8 = 5, 9
V_WM, V_WX = 13, 14
V_PKW, V_C = 15, 160
BUF = [dict(B=16, Am=20, Ax=24), dict(B=28, Am=32, Ax=36), dict(B=104, Am=108, Ax=112)]
ACC_M, ACC_X = 40, 56
V_WPHI = 72
V_D2 = 88
V_F = 104
NVGPR = 168
NL = 2

STAMP_ALL = False
def stamp(p, idx, on):
    if on != "L" and not STAMP_ALL and idx not in (0, 30): return
    if idx > 20:
        b = idx - 2
        if b < 23: return
        if EXP == "twice" and b < 26: return
        idx = 21 + (b - 23)
    if on and idx < NSTAMP: p(f"s_memtime s[{S_STAMP + 2 * idx}:{S_STAMP + 2 * idx + 1}]")

def stamp_dump(p, n, on):
    if not on: return
    p("s_waitcnt lgkmcnt(0)")
    p(f"s_lshl_b32 s{S_T0}, s2, 4\ns_add_u32 s{S_T0}, s{S_T0}, s{S_WAVE}\ns_lshl_b32 s{S_T0}, s{S_T0}, 7\ns_add_u32 s{S_T0}, s{S_T0}, {WS_STAMP}")
    p(f"v_mov_b32 v2, 0")
    for i in range(n):
        p(f"v_mov_b32 v3, s{S_STAMP + 2 * i}")
        p.vm(f"buffer_store_dword v3, v2, s[{S_WS}:{S_WS+3}], s{S_T0} offen offset:{4 * i}")

def code_warm(p, first_thread, nper):
    lsk = Prog.label("cw")
    lpc = Prog.label("pc")
    p(f"""
v_subrev_u32 v2, {first_thread}, v0
v_cmp_gt_u32 vcc, {nper}, v2
s_and_saveexec_b64 s[4:5], vcc
s_cbranch_execz {lsk}
s_getpc_b64 s[6:7]
{lpc}:
s_sub_u32 s6, s6, {lpc}-L_code0
s_subb_u32 s7, s7, 0
s_lshr_b32 s3, s2, 3
s_and_b32 s3, s3, 31
s_mul_i32 s3, s3, {nper}
v_add_u32 v2, s3, v2
v_min_u32 v2, (L_end-L_code0)/128, v2
v_lshlrev_b32 v2, 7, v2
v_mov_b32 v3, s7
v_add_co_u32 v2, vcc, s6, v2
s_nop 1
v_addc_co_u32 v3, vcc, 0, v3, vcc
global_load_dword v167, v[2:3], off
{lsk}:
s_mov_b64 exec, s[4:5]
""")

def prologue_common(p):
    p(f"""
L_code0:
s_cmp_ge_u32 s2, 256
s_cbranch_scc1 L_end
""")
    if WARM: code_warm(p, 704, WARM)
    p(f"""
s_load_dwordx4 s[36:39], s[0:1], 0
s_load_dwordx2 s[40:41], s[0:1], 16
s_load_dwordx2 s[42:43], s[0:1], 104
v_and_b32 v{V_LANE}, 63, v0
v_lshrrev_b32 v{V_T}, 6, v0
s_and_b32 s{S_T0}, s2, 7
s_lshl_b32 s{S_T0}, s{S_T0}, 2
v_readfirstlane_b32 s{S_WAVE}, v{V_T}
s_lshr_b32 s{S_T1}, s2, 3
s_and_b32 s{S_T2}, s{S_T1}, 3
s_add_u32 s{S_TT}, s{S_T0}, s{S_T2}
s_lshr_b32 s{S_HG}, s{S_T1}, 2
s_and_b32 s{S_J}, s{S_WAVE}, 1
s_lshr_b32 s{S_I}, s{S_WAVE}, 1
s_and_b32 s{S_I}, s{S_I}, 1
s_mov_b32 s{S_MASK63}, -1
s_mov_b32 s{S_MASK63+1}, 0x7fffffff
""")

def srds(p):
    p(f"""
s_waitcnt lgkmcnt(0)
s_mov_b32 s{S_X}, s36
s_and_b32 s{S_X+1}, s37, 0xffff
s_mov_b32 s{S_X+2}, {2048*1152}
s_mov_b32 s{S_X+3}, 0x20000
s_mov_b32 s{S_W}, s38
s_and_b32 s{S_W+1}, s39, 0xffff
s_mov_b32 s{S_W+2}, {576*3456}
s_mov_b32 s{S_W+3}, 0x20000
s_mov_b32 s{S_PHI}, s40
s_and_b32 s{S_PHI+1}, s41, 0xffff
s_mov_b32 s{S_PHI+2}, {32*648}
s_mov_b32 s{S_PHI+3}, 0x20000
s_mov_b32 s{S_WS}, s42
s_and_b32 s{S_WS+1}, s43, 0xffff
s_mov_b32 s{S_WS+2}, 0x10000000
s_mov_b32 s{S_WS+3}, 0x20000
""")

def gemm_addr_setup(p):
    a, b, c, d, e = 16, 17, 18, 19, 20
    p(f"""
v_and_b32 v{a}, 31, v{V_LANE}
s_lshl_b32 s{S_T0}, s{S_I}, 5
v_add_u32 v{a}, s{S_T0}, v{a}
v_lshrrev_b32 v{b}, 1, v{a}
v_and_b32 v{b}, 7, v{b}
v_lshrrev_b32 v{c}, 5, v{V_LANE}
v_xor_b32 v{b}, v{b}, v{c}
v_lshlrev_b32 v{b}, 4, v{b}
v_lshlrev_b32 v{a}, 7, v{a}
v_add_u32 v{a}, v{a}, v{b}
""")
    for k in range(4):
        p(f"v_xor_b32 v{V_XA+k}, {32*k}, v{a}")
        p(f"v_add_u32 v{V_XA8+k}, 0x10000, v{V_XA+k}")
    p(f"""
v_lshrrev_b32 v{a}, 5, v{V_LANE}
v_bfe_u32 v{b}, v{V_LANE}, 2, 2
v_lshl_add_u32 v{a}, v{a}, 3, v{b}
v_mul_u32_u24 v{a}, 144, v{a}
v_add_u32 v{a}, {RB}, v{a}
v_and_b32 v{b}, 1, v{b}
v_and_b32 v{c}, 1, v{V_LANE}
v_lshl_add_u32 v{a}, v{c}, 3, v{a}
v_lshl_add_u32 v{V_WX}, v{b}, 7, v{a}
v_bfe_u32 v{c}, v{V_LANE}, 4, 1
v_bfe_u32 v{d}, v{V_LANE}, 1, 1
v_lshl_add_u32 v{c}, v{c}, 1, v{d}
s_mul_i32 s{S_T0}, s{S_J}, 5
v_add_u32 v{c}, s{S_T0}, v{c}
v_lshlrev_b32 v{c}, 2, v{c}
v_sub_u32 v{c}, v{c}, v{b}
v_add_u32 v{c}, 2, v{c}
v_mul_u32_u24 v{d}, 57, v{c}
v_lshrrev_b32 v{d}, 9, v{d}
v_mul_u32_u24 v{d}, 9, v{d}
v_sub_u32 v{c}, v{c}, v{d}
v_lshl_add_u32 v{V_WM}, v{c}, 4, v{a}
""")

def n_super():
    return -(-1728 // (7 * NL))
def w_needed(chunk):
    return min(n_super() - 1, (64 * (chunk + 1) - 1) // (7 * NL))
def w_free_after(g):
    top = 7 * NL * g + 7 * NL - 1 - RING
    if top < 0: return -2
    return max(0, -(-(top + 1 - 48) // 64))

V_LW, V_LX, V_LR, V_LT = 2, 3, 6, 8
S_LM0W, S_LM0X, S_L = 44, 45, 46
def loader_setup(p):
    a, b, c = 16, 17, 18
    p(f"""
s_sub_u32 s{S_L}, s{S_WAVE}, 8
s_mul_i32 s{S_LM0W}, s{S_L}, 1008
s_lshl_b32 s{S_LM0X}, s{S_L}, 10
s_mul_i32 s{S_T0}, s{S_L}, 7
v_mul_u32_u24 v{V_LR}, 57, v{V_LANE}
v_lshrrev_b32 v{V_LR}, 9, v{V_LR}
v_mul_u32_u24 v{b}, 9, v{V_LR}
v_sub_u32 v{b}, v{V_LANE}, v{b}
v_add_u32 v{V_LR}, s{S_T0}, v{V_LR}
s_mul_i32 s{S_T2}, s{S_HG}, 144
v_mul_u32_u24 v{a}, 3456, v{V_LR}
v_add_u32 v{a}, s{S_T2}, v{a}
v_and_b32 v{c}, 1, v{V_LR}
v_add3_u32 v{c}, v{b}, v{c}, 7
v_mul_u32_u24 v{c}, 7, v{c}
v_mul_u32_u24 v19, 57, v{c}
v_lshrrev_b32 v19, 9, v19
v_mul_u32_u24 v19, 9, v19
v_sub_u32 v{c}, v{c}, v19
v_lshl_add_u32 v{V_LW}, v{c}, 4, v{a}
s_lshl_b32 s{S_T0}, s{S_L}, 3
v_lshrrev_b32 v{a}, 3, v{V_LANE}
v_add_u32 v{a}, s{S_T0}, v{a}
v_bfe_u32 v{b}, v{a}, 1, 3
v_and_b32 v{c}, 7, v{V_LANE}
v_mul_u32_u24 v{a}, 1152, v{a}
v_xor_b32 v19, v{b}, v{c}
v_lshl_add_u32 v{V_LX}, v19, 4, v{a}
s_mul_i32 s{S_T1}, s{S_TT}, {64*1152}
""")

def dma_w(p, g):
    v0 = 7 * NL * g
    ps = v0 // 576
    k0 = v0 - 576 * ps
    ring = (v0 % RING) * 144
    cross = k0 + 7 * NL > 576 and ps < 2
    voff = V_LW
    if not cross:
        p(f"s_add_u32 m0, s{S_LM0W}, {RB + ring}\ns_mov_b32 s{S_SO}, {k0 * 3456 + SEG[ps]}")
    else:
        x = 576 - k0
        d0 = k0 * 3456 + SEG[ps]
        d1 = SEG[ps + 1] - x * 3456
        p(f"""
v_cmp_le_u32 vcc, {x}, v{V_LR}
v_add_u32 v{V_LT}, {d0}, v{voff}
v_subrev_u32 v{V_LT+1}, {-d1}, v{voff}
s_add_u32 m0, s{S_LM0W}, {RB + ring}
v_cndmask_b32 v{V_LT}, v{V_LT}, v{V_LT+1}, vcc
s_mov_b32 s{S_SO}, 0
""")
        assert d1 < 0
        voff = V_LT
    p.vm(f"buffer_load_dwordx4 v{voff}, s[{S_W}:{S_W+3}], s{S_SO} offen lds", ("w", g))

def dma_x(p, cb, n):
    p(f"s_add_u32 m0, s{S_LM0X}, {XB + cb * 8192 + n * NL * 1024}\ns_add_u32 s{S_SO}, s{S_T1}, {n * NL * 8 * 1152 + cb * 128}")
    p.vm(f"buffer_load_dwordx4 v{V_LX}, s[{S_X}:{S_X+3}], s{S_SO} offen lds", ("x", cb))

def gen_loader(st_on):
    if st_on: st_on = "L"
    assert NL % 2 == 0
    p = Prog()
    loader_setup(p)
    items = []
    nw = 0
    for c in range(27):
        if c < 9: items += [("x", c, n) for n in range(8 // NL)]
        while nw <= w_needed(c):
            items.append(("w", nw, c)); nw += 1
    pos = 0
    cur63 = None
    def issue(maxchunk, bar):
        nonlocal pos, cur63
        while pos < len(items):
            it = items[pos]
            ch = it[1] if it[0] == "x" else it[2]
            if ch > maxchunk: break
            if it[0] == "w" and w_free_after(it[1]) > bar: break
            want63 = it[0] == "w"
            if cur63 != want63:
                p(f"s_mov_b64 exec, s[{S_MASK63}:{S_MASK63+1}]" if want63 else "s_mov_b64 exec, -1")
                cur63 = want63
            if it[0] == "x": dma_x(p, it[1], it[2])
            else: dma_w(p, it[1])
            pos += 1
    def landed(chunk):
        assert all((it[1] if it[0] == "x" else it[2]) > chunk for it in items[pos:]), chunk
        tags = [("w", i) for i in range(w_needed(chunk) + 1)]
        if chunk < 9: tags.append(("x", chunk))
        p.vmwait(tags)
    issue(1, -2)
    landed(0)
    p("s_barrier")
    stamp(p, 1, st_on)
    issue(3, -2)
    for b in range(26):
        landed(b + 1)
        p("s_barrier")
        stamp(p, b + 2, st_on)
        issue(b + 6, b)
    assert pos == len(items), (pos, len(items))
    p("s_barrier")
    stamp(p, 28, st_on)
    p("s_barrier")
    stamp(p, 29, st_on)
    stamp(p, 30, st_on)
    stamp_dump(p, NSTAMP, st_on)
    p("s_waitcnt vmcnt(0)\ns_branch L_end")
    return p.text()

def reads(p, ps, S, part):
    b = BUF[S % 3]
    cb, ks = S // 4, S % 4
    o = ((576 * ps + 16 * S) % RING) * 144
    if part == 0:
        if cb < 8: p(f"ds_read_b128 v[{b['B']}:{b['B']+3}], v{V_XA+ks} offset:{XB + cb*8192}")
        else: p(f"ds_read_b128 v[{b['B']}:{b['B']+3}], v{V_XA8+ks} offset:{XB}")
        p(f"ds_read_b64_tr_b16 v[{b['Am']}:{b['Am']+1}], v{V_WM} offset:{o}")
        p(f"ds_read_b64_tr_b16 v[{b['Am']+2}:{b['Am']+3}], v{V_WM} offset:{o + 576}")
    else:
        p(f"ds_read_b64_tr_b16 v[{b['Ax']}:{b['Ax']+1}], v{V_WX} offset:{o}")
        p(f"ds_read_b64_tr_b16 v[{b['Ax']+2}:{b['Ax']+3}], v{V_WX} offset:{o + 576}")

def mfma(p, S, which):
    b = BUF[S % 3]
    acc, a = (ACC_M, b["Am"]) if which == 0 else (ACC_X, b["Ax"])
    c = "0" if S == 0 else f"v[{acc}:{acc+15}]"
    p(f"v_mfma_f32_32x32x16_bf16 v[{acc}:{acc+15}], v[{a}:{a+3}], v[{b['B']}:{b['B']+3}], {c}")

def gemm_pass(p, ps, st_on, last_barrier=True):
    for S in (0, 1):
        reads(p, ps, S, 0); reads(p, ps, S, 1)
    for S in range(36):
        p(f"s_waitcnt lgkmcnt({5 if S < 35 else 0})")
        if S % 4 == 2:
            p("s_barrier")
            stamp(p, 9 * ps + S // 4 + 2, st_on)
        mfma(p, S, 0)
        if S + 2 < 36: reads(p, ps, S + 2, 0)
        mfma(p, S, 1)
        if S + 2 < 36: reads(p, ps, S + 2, 1)

def wphi_gather(p):
    base, hreg, m, msk, tmp = 16, 17, 18, 19, 20
    p(f"""
v_and_b32 v{m}, 31, v{V_LANE}
v_lshrrev_b32 v{hreg}, 5, v{V_LANE}
v_cmp_eq_u32 vcc, 20, v{m}
v_mov_b32 v{tmp}, 17
s_nop 0
v_cndmask_b32 v{base}, v{m}, v{tmp}, vcc
v_cmp_gt_u32 s[44:45], 17, v{m}
s_or_b64 s[44:45], s[44:45], vcc
v_min_u32 v{base}, 17, v{base}
v_lshlrev_b32 v{base}, 1, v{base}
v_cndmask_b32 v{msk}, 0, -1, s[44:45]
v_mul_u32_u24 v{tmp}, 144, v{hreg}
s_and_b32 s{S_T0}, s{S_WAVE}, 3
s_lshl_b32 s{S_T0}, s{S_T0}, 11
s_add_u32 s{S_T0}, s{S_T0}, {PK}
v_add3_u32 v{base}, v{base}, v{tmp}, s{S_T0}
v_cmp_eq_u32 s[46:47], 1, v{hreg}
""")
    tabs = {0: [(0, 0, 16), (0, 16, 16), (1, -2, 16), (1, 14, 8)],
            1: [(0, -4, 8), (0, 4, 16), (1, -14, 16), (1, 2, 16)]}
    lj1, lend = Prog.label("wg_j1"), Prog.label("wg_end")
    p(f"s_cmp_eq_u32 s{S_J}, 1\ns_cbranch_scc1 {lj1}")
    for j in (0, 1):
        if j == 1: p(f"{lj1}:")
        masks = []
        for f, (hd, off, lim) in enumerate(tabs[j]):
            for jj in range(8):
                rho = [(jj & 3) + 8 * (jj >> 2) + 4 * h for h in (0, 1)]
                dd = [r + off for r in rho]
                ok = [0 <= dd[h] < 18 and rho[h] < lim for h in (0, 1)]
                reg = V_WPHI + 4 * f + jj // 2
                addr = hd * 648 + dd[0] * 36
                op = "ds_read_u16_d16_hi" if jj & 1 else "ds_read_u16"
                dst = reg if jj & 1 else reg + V_D2 - V_WPHI
                if ok[0] or ok[1]:
                    if addr >= 0:
                        p(f"{op} v{dst}, v{base} offset:{addr}")
                    else:
                        p(f"v_subrev_u32 v{tmp}, {-addr}, v{base}\nv_max_i32 v{tmp}, 0, v{tmp}\n{op} v{dst}, v{tmp}")
                else:
                    p(f"v_mov_b32 v{dst}, 0")
                if jj & 1 == 0: masks.append([reg, [0, 0]])
                for h in (0, 1):
                    if ok[h]: masks[-1][1][h] |= 0xFFFF0000 if jj & 1 else 0xFFFF
        p("s_waitcnt lgkmcnt(0)")
        for reg, mk in masks:
            if mk != [0, 0]: p(f"v_or_b32 v{reg}, v{reg}, v{reg + V_D2 - V_WPHI}")
            if mk == [0, 0]:
                p(f"v_mov_b32 v{reg}, 0")
            elif mk[0] == mk[1] == 0xFFFFFFFF:
                p(f"v_and_b32 v{reg}, v{reg}, v{msk}")
            else:
                p(f"v_mov_b32 v{tmp}, {mk[0]}\nv_mov_b32 v21, {mk[1]}\nv_cndmask_b32 v{tmp}, v{tmp}, v21, s[46:47]\nv_and_b32 v{tmp}, v{tmp}, v{msk}\nv_and_b32 v{reg}, v{reg}, v{tmp}")
        if j == 0: p(f"s_branch {lend}")
    p(f"{lend}:")

def second_stage(s):
    F = [V_F, V_F + 4, V_F + 8]
    l1, le = Prog.label("ss_j1"), Prog.label("ss_end")
    t = f"s_nop 7\ns_nop 3\ns_cmp_eq_u32 s{S_J}, 1\ns_cbranch_scc1 {l1}\n"
    for j in (0, 1):
        ta, tb, mx = (F[0], F[1], F[2]) if j == 0 else (F[1], F[2], F[0])
        if j == 1: t += f"{l1}:\n"
        for r in range(4): t += f"v_cvt_pk_bf16_f32 v{ta+r}, v{ACC_M+2*r}, v{ACC_M+2*r+1}\n"
        for r in range(4): t += f"v_cvt_pk_bf16_f32 v{tb+r}, v{ACC_M+8+2*r}, v{ACC_M+8+2*r+1}\n"
        for r in range(4): t += f"v_cvt_pk_bf16_f32 v{mx+r}, v{ACC_X+2*r}, v{ACC_X+2*r+1}\n"
        if j == 0: t += f"s_branch {le}\n"
    t += f"{le}:\ns_nop 1\n"
    s.atomic(t); t = ""
    DA, DB = V_D2, ACC_M
    t += f"v_mfma_f32_32x32x16_bf16 v[{DA}:{DA+15}], v[{V_WPHI}:{V_WPHI+3}], v[{F[0]}:{F[0]+3}], 0\n"
    t += f"v_mfma_f32_32x32x16_bf16 v[{DB}:{DB+15}], v[{V_WPHI+8}:{V_WPHI+11}], v[{F[1]}:{F[1]+3}], 0\n"
    t += f"v_mfma_f32_32x32x16_bf16 v[{DA}:{DA+15}], v[{V_WPHI+4}:{V_WPHI+7}], v[{F[0]+4}:{F[0]+7}], v[{DA}:{DA+15}]\n"
    t += f"v_mfma_f32_32x32x16_bf16 v[{DB}:{DB+15}], v[{V_WPHI+12}:{V_WPHI+15}], v[{F[2]}:{F[2]+3}], v[{DB}:{DB+15}]\n"
    t += "s_nop 7\ns_nop 3\n"
    s(t)
    s.brk()
    return DA, DB

EP, EM = 118, 128
OPK = 138
TM = 148
def softmax(s, D):
    mx, mn, t1, t2, A, S, T = TM, TM + 1, TM + 2, TM + 3, TM + 4, TM + 6, TM + 8
    C = V_C
    t = f"v_max3_f32 v{mx}, v{D}, v{D+1}, v{D+2}\nv_min3_f32 v{mn}, v{D}, v{D+1}, v{D+2}\n"
    for k in (3, 5, 7):
        t += f"v_max3_f32 v{mx}, v{mx}, v{D+k}, v{D+k+1}\nv_min3_f32 v{mn}, v{mn}, v{D+k}, v{D+k+1}\n"
    t += f"v_mov_b32 v{t1}, v{mx}\nv_mov_b32 v{t2}, v{mn}\ns_nop 1\n"
    t += f"v_permlane32_swap_b32 v{mx}, v{t1}\nv_permlane32_swap_b32 v{mn}, v{t2}\ns_nop 0\n"
    t += f"v_max_f32 v{mx}, v{mx}, v{t1}\nv_min_f32 v{mn}, v{mn}, v{t2}\n"
    t += f"v_mul_f32 v{A}, v{C}, v{mx}\nv_mul_f32 v{A+1}, v{C}, v{mn}\n"
    s(t); s.brk()
    for grp in ((0, 1, 2), (3, 4, 5), (6, 7, 8)):
        t = ""
        for k in grp:
            t += f"v_fma_f32 v{EP+k}, v{D+k}, v{C}, -v{A}\nv_fma_f32 v{EM+k}, -v{D+k}, v{C}, v{A+1}\n"
        for k in grp:
            t += f"v_exp_f32 v{EP+k}, v{EP+k}\nv_exp_f32 v{EM+k}, v{EM+k}\n"
        s(t); s.brk()
    t = "s_nop 0\n"
    t += f"v_add_f32 v{S}, v{EP}, v{EP+1}\nv_add_f32 v{S+1}, v{EM}, v{EM+1}\n"
    t += f"v_add_f32 v{T}, v{EP+2}, v{EP+3}\nv_add_f32 v{T+1}, v{EM+2}, v{EM+3}\n"
    for k in (4, 6):
        t += f"v_add_f32 v{S}, v{S}, v{EP+k}\nv_add_f32 v{S+1}, v{S+1}, v{EM+k}\n"
        t += f"v_add_f32 v{T}, v{T}, v{EP+k+1}\nv_add_f32 v{T+1}, v{T+1}, v{EM+k+1}\n"
    t += f"v_add_f32 v{S}, v{S}, v{EP+8}\nv_add_f32 v{S+1}, v{S+1}, v{EM+8}\n"
    t += f"v_add_f32 v{S}, v{S}, v{T}\nv_add_f32 v{S+1}, v{S+1}, v{T+1}\n"
    t += f"v_mov_b32 v{t1}, v{S}\nv_mov_b32 v{t2}, v{S+1}\ns_nop 1\n"
    t += f"v_permlane32_swap_b32 v{S}, v{t1}\nv_permlane32_swap_b32 v{S+1}, v{t2}\ns_nop 0\n"
    t += f"v_add_f32 v{S}, v{S}, v{t1}\nv_add_f32 v{S+1}, v{S+1}, v{t2}\n"
    t += f"v_rcp_f32 v{S}, v{S}\nv_rcp_f32 v{S+1}, v{S+1}\ns_nop 0\n"
    s(t); s.brk()
    t = ""
    for k in range(0, 8, 2):
        for E, R in ((EP, S), (EM, S + 1)):
            t += f"v_mul_f32 v{E+k}, v{E+k}, v{R}\nv_mul_f32 v{E+k+1}, v{E+k+1}, v{R}\n"
        t += f"v_cvt_pk_bf16_f32 v{OPK+k//2}, v{EP+k}, v{EP+k+1}\n"
        t += f"v_cvt_pk_bf16_f32 v{OPK+4+k//2}, v{EM+k}, v{EM+k+1}\n"
        if k == 2:
            s(t); s.brk(); t = ""
    t += f"v_mul_f32 v{EP+8}, v{EP+8}, v{S}\nv_mul_f32 v{EM+8}, v{EM+8}, v{S+1}\n"
    t += f"v_cvt_pk_bf16_f32 v{OPK+8}, v{EP+8}, v{EM+8}\n"
    s(t); s.brk()

def phik_write(s, hb):
    o = 80 * hb
    s(f"""
ds_write_b64 v{V_PKW}, v[{OPK}:{OPK+1}] offset:{o}
ds_write_b64 v{V_PKW}, v[{OPK+2}:{OPK+3}] offset:{o+16}
ds_write_b64 v{V_PKW}, v[{OPK+4}:{OPK+5}] offset:{o+32}
ds_write_b64 v{V_PKW}, v[{OPK+6}:{OPK+7}] offset:{o+48}
ds_write_b64 v{V_PKW}, v[{OPK+8}:{OPK+9}] offset:{o+64}
""")
    s.brk()

V_QOFF = 158
def phiq_store(s, hb):
    s(f"s_add_u32 s{S_T2}, s{S_T1}, {hb * 2 * 2304}")
    s.vm(f"buffer_store_dwordx4 v[{OPK}:{OPK+3}], v{V_QOFF}, s[{S_WS}:{S_WS+3}], s{S_T2} offen", "st")
    s.vm(f"buffer_store_dwordx4 v[{OPK+4}:{OPK+7}], v{V_QOFF}, s[{S_WS}:{S_WS+3}], s{S_T2} offen offset:1024", "st")
    s.vm(f"buffer_store_dword v{OPK+8}, v{V_QOFF+1}, s[{S_WS}:{S_WS+3}], s{S_T2} offen offset:2048", "st")
    s("s_nop 1")
    s.brk()

def soft_setup(p, is_k):
    p(f"v_mov_b32 v{V_C}, 0x3fb8aa3b\nv_mov_b32 v{OPK+9}, 0")
    if is_k:
        p(f"""
v_and_b32 v16, 31, v{V_LANE}
s_lshl_b32 s{S_T0}, s{S_I}, 5
v_add_u32 v16, s{S_T0}, v16
v_mul_u32_u24 v16, {PKP}, v16
v_lshrrev_b32 v17, 5, v{V_LANE}
v_lshl_add_u32 v16, v17, 3, v16
s_mul_i32 s{S_T0}, s{S_J}, 160
s_add_u32 s{S_T0}, s{S_T0}, {PK}
v_add_u32 v{V_PKW}, s{S_T0}, v16
""")
    else:
        p(f"v_lshlrev_b32 v{V_QOFF}, 4, v{V_LANE}\nv_lshlrev_b32 v{V_QOFF+1}, 2, v{V_LANE}")

V_VW0, V_VW1 = 72, 73
V_KA, V_KA1, V_KB = 74, 75, 76
def v_setup(p):
    p(f"""
v_and_b32 v16, 31, v{V_LANE}
s_lshl_b32 s{S_T0}, s{S_I}, 5
v_add_u32 v16, s{S_T0}, v16
v_mul_u32_u24 v16, {VP}, v16
v_lshrrev_b32 v17, 5, v{V_LANE}
v_add_u32 v16, {VB}, v16
v_lshl_add_u32 v{V_VW0}, v17, 3, v16
v_mul_u32_u24 v18, 20, v17
v_add_u32 v{V_VW1}, v16, v18
s_and_b32 s{S_T0}, s{S_WAVE}, 3
s_mul_i32 s{S_T1}, s{S_T0}, 48
v_mul_u32_u24 v16, {VP}, v{V_LANE}
s_add_u32 s{S_T1}, s{S_T1}, {VB}
v_add_u32 v16, s{S_T1}, v16
v_mov_b32 v18, 0x3f80
v_mov_b32 v19, 0
ds_write_b32 v16, v18 offset:36
ds_write_b64 v16, v[18:19] offset:40
v_lshrrev_b32 v16, 5, v{V_LANE}
v_bfe_u32 v17, v{V_LANE}, 2, 2
v_lshl_add_u32 v16, v16, 3, v17
v_bfe_u32 v17, v{V_LANE}, 4, 1
v_and_b32 v18, 3, v{V_LANE}
v_lshl_add_u32 v17, v17, 2, v18
v_mul_u32_u24 v19, {PKP}, v16
s_mul_i32 s{S_T1}, s{S_T0}, 80
s_add_u32 s{S_T1}, s{S_T1}, {PK}
v_add_u32 v19, s{S_T1}, v19
v_lshl_add_u32 v{V_KA}, v17, 3, v19
v_and_b32 v18, 1, v{V_LANE}
v_lshl_add_u32 v{V_KA1}, v18, 3, v19
v_add_u32 v{V_KA1}, 64, v{V_KA1}
v_min_u32 v17, 5, v17
v_mul_u32_u24 v19, {VP}, v16
s_mul_i32 s{S_T1}, s{S_T0}, 48
s_add_u32 s{S_T1}, s{S_T1}, {VB}
v_add_u32 v19, s{S_T1}, v19
v_lshl_add_u32 v{V_KB}, v17, 3, v19
""")

def v_write(s):
    l1, le = Prog.label("vw_j1"), Prog.label("vw_end")
    Q = V_D2
    t = "s_nop 7\ns_nop 3\n"
    for r in range(8): t += f"v_cvt_pk_bf16_f32 v{Q+r}, v{ACC_M+2*r}, v{ACC_M+2*r+1}\n"
    for r in range(2): t += f"v_cvt_pk_bf16_f32 v{Q+8+r}, v{ACC_X+2*r}, v{ACC_X+2*r+1}\n"
    def off(col): return 48 * (col // 18) + 2 * (col % 18)
    def wr(reg, col0):
        o0, o1 = off(col0), off(col0 + 4)
        assert o1 - o0 in (8, 20)
        return f"ds_write_b32 v{V_VW0 if o1 - o0 == 8 else V_VW1}, v{reg} offset:{o0}\n"
    t += f"s_cmp_eq_u32 s{S_J}, 1\ns_cbranch_scc1 {l1}\n"
    for j in (0, 1):
        if j == 1: t += f"{l1}:\n"
        for r in range(8):
            t += wr(Q + r, 40 * j + 8 * (r // 2) + 2 * (r % 2))
        if j == 0: t += f"s_branch {le}\n"
    t += f"{le}:\n"
    for r in range(2): t += wr(Q + 8 + r, 32 + 2 * r)
    t += "s_waitcnt lgkmcnt(0)\n"
    s.atomic(t); s.brk()

def kv_partial(s):
    A0, A1, Bf = 88, 104, 120
    D0, D1 = ACC_M, ACC_X
    t = ""
    for k in range(4):
        for q in range(2):
            ro = (16 * k + 4 * q)
            t += f"ds_read_b64_tr_b16 v[{A0+4*k+2*q}:{A0+4*k+2*q+1}], v{V_KA} offset:{ro*PKP}\n"
            t += f"ds_read_b64_tr_b16 v[{Bf+4*k+2*q}:{Bf+4*k+2*q+1}], v{V_KB} offset:{ro*VP}\n"
            t += f"ds_read_b64_tr_b16 v[{A1+4*k+2*q}:{A1+4*k+2*q+1}], v{V_KA1} offset:{ro*PKP}\n"
        if k == 1:
            s(t); s.brk(); t = ""
    t += "s_waitcnt lgkmcnt(0)\n"
    s(t); s.brk()
    t = ""
    for k in range(4):
        c0 = "0" if k == 0 else f"v[{D0}:{D0+15}]"
        c1 = "0" if k == 0 else f"v[{D1}:{D1+15}]"
        t += f"v_mfma_f32_32x32x16_bf16 v[{D0}:{D0+15}], v[{A0+4*k}:{A0+4*k+3}], v[{Bf+4*k}:{Bf+4*k+3}], {c0}\n"
        t += f"v_mfma_f32_32x32x16_bf16 v[{D1}:{D1+15}], v[{A1+4*k}:{A1+4*k+3}], v[{Bf+4*k}:{Bf+4*k+3}], {c1}\n"
    t += "s_nop 7\ns_nop 3\n"
    s(t); s.brk()
    P = 88
    t = ""
    for r in range(8): t += f"v_cvt_pk_bf16_f32 v{P+r}, v{D0+2*r}, v{D0+2*r+1}\n"
    t += f"v_cvt_pk_bf16_f32 v{P+8}, v{D1}, v{D1+1}\n"
    t += f"""
v_and_b32 v104, 31, v{V_LANE}
v_lshrrev_b32 v105, 5, v{V_LANE}
v_cmp_gt_u32 vcc, 19, v104
v_cmp_eq_u32 s[44:45], 20, v104
s_or_b64 s[44:45], s[44:45], vcc
v_min_u32 v104, 19, v104
v_mul_u32_u24 v105, 20, v105
v_add_u32 v104, v104, v105
v_lshlrev_b32 v105, 2, v104
v_lshlrev_b32 v104, 4, v104
s_lshl_b32 s{S_T1}, s{S_HG}, 5
s_add_u32 s{S_T1}, s{S_T1}, s{S_TT}
s_lshl_b32 s{S_T1}, s{S_T1}, 2
s_and_b32 s{S_T0}, s{S_WAVE}, 3
s_add_u32 s{S_T1}, s{S_T1}, s{S_T0}
s_mul_i32 s{S_T1}, s{S_T1}, 1440
s_add_u32 s{S_T1}, s{S_T1}, {WS_PART}
s_mov_b64 exec, s[44:45]
"""
    s(t)
    s.vm(f"buffer_store_dwordx4 v[{P}:{P+3}], v104, s[{S_WS}:{S_WS+3}], s{S_T1} offen", "st")
    s.vm(f"buffer_store_dwordx4 v[{P+4}:{P+7}], v104, s[{S_WS}:{S_WS+3}], s{S_T1} offen offset:640", "st")
    s.vm(f"buffer_store_dword v{P+8}, v105, s[{S_WS}:{S_WS+3}], s{S_T1} offen offset:1280", "st")
    s("s_mov_b64 exec, -1")
    s.brk()

def side_iters(p, its, slices, st_on=False):
    for n, it in enumerate(its):
        emit_items(p, slices[n])
        p("s_barrier")
        stamp(p, it + 2, st_on)

WS_DBG = 0x1000000
def dump_regs(s, regs, slot):
    s(f"s_nop 7\ns_nop 7\ns_lshl_b32 s{S_T0}, s2, 3\ns_add_u32 s{S_T0}, s{S_T0}, s{S_WAVE}\ns_lshl_b32 s{S_T0}, s{S_T0}, 2\ns_add_u32 s{S_T0}, s{S_T0}, {slot}\ns_lshl_b32 s{S_T0}, s{S_T0}, 14\ns_add_u32 s{S_T0}, s{S_T0}, {WS_DBG}\nv_lshlrev_b32 v165, 2, v{V_LANE}")
    for n, r in enumerate(regs):
        s(f"s_add_u32 s{S_T2}, s{S_T0}, {n * 256}")
        s.vm(f"buffer_store_dword v{r}, v165, s[{S_WS}:{S_WS+3}], s{S_T2} offen", "dbg")
    s("s_nop 1")

KG = dict(RAW=16, LDT=20, NDL=21, D2P=22, DT2=23, AR=24, BI=25, C=26, E1=28, E2=30, E4=32, E8=34, E16=36, E256=38,
          G=40,
          ZX=(54, 56), ZY=(58, 60), TX=62, TY=64, CV=66, VA=68,
          ACC=88, BF=120, AF=136, P=152,
          KO=2, DSK=3)
S_GP = 8
S_CH, S_UNIT = 36, 37

def kg_setup(p):
    k = KG
    p(f"""
s_lshr_b32 s38, s{S_UNIT}, 1
s_lshr_b32 s39, s2, 3
s_mul_i32 s39, s39, 3
s_add_u32 s38, s38, s39
s_and_b32 s39, s2, 7
s_mul_i32 s{S_CH}, s39, 72
s_add_u32 s{S_CH}, s{S_CH}, s38
s_and_b32 s39, s{S_UNIT}, 1
s_lshl_b32 s38, s{S_CH}, 8
s_lshl_b32 s39, s39, 7
s_add_u32 s38, s38, s39
v_lshlrev_b32 v{k['TX']}, 1, v{V_LANE}
v_add_u32 v{k['TX']}, s38, v{k['TX']}
s_lshl_b32 s38, s{S_CH}, 1
v_mov_b32 v{k['TY']}, s38
""")
    for q in range(4):
        p.vm(f"global_load_ushort v{k['RAW']+q}, v{k['TX']}, s[{S_GP+2+2*q}:{S_GP+3+2*q}]", "kgp")
    p.vm(f"global_load_ushort v{k['DSK']}, v{k['TY']}, s[42:43]", "kgp")
    p.vm(f"global_load_ushort v{k['LDT']}, v{k['TY']}, s[{S_GP+10}:{S_GP+11}]", "kgp")
    r, kq, t, u = k["ZX"][0], k["ZX"][1], k["ZY"][0], k["ZY"][1]
    p(f"""
s_mul_i32 s38, s{S_UNIT}, {KG_UNIT}
s_add_u32 s38, s38, {KGS}
s_mov_b32 m0, s38
v_and_b32 v{r}, 15, v{V_LANE}
v_lshrrev_b32 v{kq}, 4, v{V_LANE}
v_lshl_add_u32 v{u}, v{kq}, 4, s38
v_mul_u32_u24 v{t}, {KROW}, v{r}
v_add_u32 v{k['VA']}, v{t}, v{u}
""")
    for n, sh in ((1, 1), (2, 2), (3, 3)):
        p(f"""
v_bfe_u32 v{t}, v{r}, {sh}, 1
v_add3_u32 v{t}, v{t}, v{r}, {(1 << (sh - 1)) - 1}
v_lshrrev_b32 v{t}, {sh}, v{t}
v_mul_u32_u24 v{t}, {KROW}, v{t}
v_add_u32 v{k['VA']+n}, v{t}, v{u}
""")
    p(f"""
v_lshlrev_b32 v{t}, 5, v{r}
v_lshl_add_u32 v{t}, v{kq}, 3, v{t}
v_sub_u32 v{k['KO']}, {4088 - 3584}, v{t}
""")

def kgen(side):
    import struct
    k = KG
    L2E = "0x3fb8aa3b"
    VA, P, G = k["VA"], k["P"], k["G"]
    def cmul(s, T, d, a, w):
        s(f"v_mul_f32 v{T}, v{a+1}, v{w+1}\nv_mul_f32 v{T+1}, v{a+1}, v{w}\nv_fma_f32 v{d}, v{a}, v{w}, -v{T}\nv_fma_f32 v{d+1}, v{a}, v{w+1}, v{T+1}")
    def sq(s, T, d, a):
        s(f"v_mul_f32 v{T}, v{a+1}, v{a+1}\nv_mul_f32 v{T+1}, v{a}, v{a+1}\nv_fma_f32 v{d}, v{a}, v{a}, -v{T}\nv_add_f32 v{d+1}, v{T+1}, v{T+1}")
    def direct(s, T, d, t, conj=False):
        lit = "0x%08x" % struct.unpack("<I", struct.pack("<f", float(t)))[0]
        if t == 1:
            s(f"v_exp_f32 v{d}, v{k['AR']}\nv_fract_f32 v{T}, v{k['BI']}")
        else:
            s(f"v_mul_f32 v{d}, {lit}, v{k['AR']}\nv_mul_f32 v{T}, {lit}, v{k['BI']}\nv_exp_f32 v{d}, v{d}\nv_fract_f32 v{T}, v{T}")
        neg = "-" if conj else ""
        s(f"v_cos_f32 v{T+1}, v{T}\nv_sin_f32 v{T}, v{T}\ns_nop 0\nv_mul_f32_e64 v{d+1}, {neg}v{d}, v{T}\nv_mul_f32 v{d}, v{d}, v{T+1}")
    def chain(s, T, Z, start, w, n, sink):
        cur = start
        for j in range(1, n):
            d = Z[j % 2]
            cmul(s, T, d, cur, w)
            sink(s, j - 1, cur)
            cur = d
        sink(s, n - 1, cur)
    def to_lds(r0, cv):
        def f(s, j, z):
            s(f"v_cvt_pk_bf16_f32 v{cv}, v{z}, v{z+1}")
            s.ds(f"ds_write_addtid_b32 v{cv} offset:{(r0 + j) * KROW}")
        return f
    def to_reg(p0):
        return lambda s, j, z: s(f"v_cvt_pk_bf16_f32 v{p0 + j}, v{z}, v{z+1}")
    def put(s, p0, n, r0):
        for j in range(n): s.ds(f"ds_write_addtid_b32 v{p0 + j} offset:{(r0 + j) * KROW}")
    def reads(s, dst, va, r0, tag):
        for ks in range(4): s.ds(f"ds_read_b128 v[{dst+4*ks}:{dst+4*ks+3}], v{va} offset:{r0 * KROW + 64 * ks}", tag)
    def mfmas(s, blk, af):
        s.dswait(("a", blk))
        acc = k["ACC"] + 4 * blk
        for ks in range(4):
            c = "0" if ks == 0 else f"v[{acc}:{acc+3}]"
            s(f"v_mfma_f32_16x16x32_bf16 v[{acc}:{acc+3}], v[{af+4*ks}:{af+4*ks+3}], v[{k['BF']+4*ks}:{k['BF']+4*ks+3}], {c}")
    TX, TY, ZX, ZY, CV = k["TX"], k["TY"], k["ZX"], k["ZY"], k["CV"]
    AF, AF2 = k["AF"], k["AF2"]
    m = Str()
    m.vmwait("kgp")
    R = k["RAW"]
    x, y = Str(), Str()
    x(f"""
v_lshlrev_b32 v{TX}, 16, v{k['LDT']}
v_mul_f32 v{TX}, {L2E}, v{TX}
v_exp_f32 v{TX}, v{TX}
v_mov_b32 v{CV}, 0x3f80
v_cvt_pk_bf16_f32 v{TX}, v{TX}, v{TX}
v_and_b32 v{TX}, 0xffff0000, v{TX}
v_mul_f32 v{k['NDL']}, 0xbfb8aa3b, v{TX}
v_mul_f32 v{k['D2P']}, 0x3e22f983, v{TX}
v_add_f32 v{k['DT2']}, v{TX}, v{TX}
""")
    y(f"""
v_lshlrev_b32 v{TY}, 16, v{R}
v_mul_f32 v{TY}, {L2E}, v{TY}
v_exp_f32 v{TY}, v{TY}
v_lshlrev_b32 v{k['BI']}, 16, v{R+1}
v_cvt_pk_bf16_f32 v{TY}, v{TY}, v{TY}
v_lshlrev_b32 v{k['C']}, 16, v{R+2}
v_and_b32 v{TY}, 0xffff0000, v{TY}
v_lshlrev_b32 v{k['C']+1}, 16, v{R+3}
""")
    m.add(merge(x.l, y.l))
    m(f"""
v_mul_f32 v{k['AR']}, v{TY}, v{k['NDL']}
v_mul_f32 v{k['BI']}, v{k['BI']}, v{k['D2P']}
v_mul_f32 v{k['C']}, v{k['C']}, v{k['DT2']}
v_mul_f32 v{k['C']+1}, v{k['C']+1}, v{k['DT2']}
""")
    m.ds(f"ds_write_addtid_b32 v{CV}")
    x, y, z = Str(), Str(), Str()
    direct(x, TX, k["E16"], 16, conj=True)
    direct(y, TY, k["E256"], 256)
    direct(z, ZX[0], k["E1"], 1)
    m.add(merge(x.l, y.l, z.l))
    x, y = Str(), Str()
    chain(x, TX, ZX, k["E16"], k["E16"], 15, to_lds(1, CV))
    sq(y, TY, k["E2"], k["E1"])
    cmul(y, TY, G, k["C"], k["E256"])
    chain(y, TY, ZY, G, k["E2"], 9, to_reg(P))
    for q in range(1, 7): cmul(y, TY, G + 2 * q, G + 2 * (q - 1), k["E256"])
    m.add(merge(x.l, y.l))
    reads(m, k["BF"], VA, 0, ("a", 1))
    put(m, P, 9, 0)
    reads(m, AF, VA + 1, 0, ("a", 1))
    x, y = Str(), Str()
    chain(x, TX, ZX, k["C"], k["E1"], 16, to_lds(0, CV))
    sq(y, TY, k["E4"], k["E2"]); sq(y, TY, k["E8"], k["E4"])
    mfmas(y, 1, AF)
    chain(y, TY, ZY, G + 2, k["E4"], 5, to_reg(P))
    chain(y, TY, ZY, G + 4, k["E4"], 5, to_reg(P + 5))
    chain(y, TY, ZY, G + 6, k["E8"], 3, to_reg(P + 10))
    chain(y, TY, ZY, G + 8, k["E8"], 3, to_reg(P + 13))
    m.add(merge(x.l, y.l))
    reads(m, AF, VA, 0, ("a", 0))
    put(m, P, 16, 0)
    reads(m, AF2, VA + 2, 0, ("a", 2))
    x, y = Str(), Str()
    chain(x, TX, ZX, G + 10, k["E8"], 3, to_reg(P))
    chain(y, TY, ZY, G + 12, k["E8"], 3, to_reg(P + 3))
    xy = merge(x.l, y.l)
    m.add(xy[:len(xy) // 2])
    mfmas(m, 0, AF)
    reads(m, AF, VA + 2, 5, ("a", 3))
    m.add(xy[len(xy) // 2:])
    mfmas(m, 2, AF2)
    reads(m, AF2, VA + 3, 10, ("a", 4))
    mfmas(m, 3, AF)
    reads(m, AF, VA + 3, 13, ("a", 5))
    put(m, P, 6, 0)
    mfmas(m, 4, AF2)
    reads(m, AF2, VA + 3, 0, ("a", 6))
    mfmas(m, 5, AF)
    reads(m, AF, VA + 3, 3, ("a", 7))
    mfmas(m, 6, AF2)
    mfmas(m, 7, AF)
    if EXP == "nods": m.l = [it for it in m.l if it[0] not in ("ds", "dsw")]
    if EXP == "novalu": m.l = [it for it in m.l if not (it[0] == "i" and it[1].startswith(("v_mul_f32", "v_fma_f32")))]
    if EXP == "nomfma": m.l = [it for it in m.l if not (it[0] == "i" and it[1].startswith("v_mfma"))]
    resolve(m.l, side)
KG["AF2"] = 16

def kg_send(s):
    k = KG
    l1, le = Prog.label("kx1"), Prog.label("kxe")
    t = f"s_nop 7\ns_mul_i32 s38, s{S_UNIT}, {KG_UNIT}\ns_add_u32 s38, s38, {KGS}\nv_lshl_add_u32 v{k['TX']}, v{V_LANE}, 4, s38\n"
    t += f"s_bitcmp1_b32 s{S_UNIT}, 0\ns_cbranch_scc1 {l1}\n"
    for par in (0, 1):
        if par: t += f"{l1}:\n"
        a0 = k["ACC"] + (16 if par == 0 else 0)
        for q in range(4): t += f"ds_write_b128 v{k['TX']}, v[{a0+4*q}:{a0+4*q+3}] offset:{1024*q}\n"
        if par == 0: t += f"s_branch {le}\n"
    t += f"{le}:\ns_waitcnt lgkmcnt(0)\n"
    s.atomic(t)

def kg_finish(s):
    k = KG
    l1, le = Prog.label("kf1"), Prog.label("kfe")
    B = k["AF"]
    t = f"s_xor_b32 s38, s{S_UNIT}, 1\ns_mul_i32 s38, s38, {KG_UNIT}\ns_add_u32 s38, s38, {KGS}\nv_lshl_add_u32 v{k['TX']}, v{V_LANE}, 4, s38\n"
    for q in range(4): t += f"ds_read_b128 v[{B+4*q}:{B+4*q+3}], v{k['TX']} offset:{1024*q}\n"
    t += f"s_mul_i32 s38, s{S_CH}, {KRP}\ns_add_u32 s38, s38, {WS_KR}\n"
    t += f"""v_lshlrev_b32 v{k['DSK']}, 16, v{k['DSK']}
v_cmp_eq_u32 vcc, 0, v{V_LANE}
v_and_b32 v{k['TY']}, 3, v{V_LANE}
v_mov_b32 v{k['TY']+1}, 0
v_lshlrev_b32 v{k['TY']}, 2, v{k['TY']}
s_add_u32 s39, s38, 4096
buffer_store_dword v{k['TY']+1}, v{k['TY']}, s[{S_WS}:{S_WS+3}], s39 offen
s_bitcmp1_b32 s{S_UNIT}, 0
s_cselect_b64 vcc, 0, vcc
s_nop 1
v_cndmask_b32 v{k['DSK']}, 0, v{k['DSK']}, vcc
"""
    t += f"s_bitcmp1_b32 s{S_UNIT}, 0\ns_cbranch_scc0 {l1}\n"
    for r in range(16): t += f"v_mov_b32 v{k['ACC']+r}, v{k['ACC']+16+r}\n"
    t += f"s_sub_u32 s38, s38, 2048\n{l1}:\ns_add_u32 s38, s38, 2048\ns_waitcnt lgkmcnt(0)\n"
    s.atomic(t)
    s(f"v_add_f32 v{k['ACC']}, v{k['ACC']}, v{k['DSK']}")
    for r in range(16): s(f"v_add_f32 v{k['ACC']+r}, v{k['ACC']+r}, v{B+r}")
    for q in range(4):
        acc = k["ACC"] + 4 * q
        c = k["P"] + 2 * q
        s(f"v_cvt_pk_bf16_f32 v{c}, v{acc+3}, v{acc+2}\nv_cvt_pk_bf16_f32 v{c+1}, v{acc+1}, v{acc}")
        s.vm(f"buffer_store_dwordx2 v[{c}:{c+1}], v{k['KO']}, s[{S_WS}:{S_WS+3}], s38 offen offset:{1536 - 512 * q}", "st")

V_UO = 16
def utrans(p, s):
    p(f"""
s_mov_b32 s36, s{S_GP}
s_and_b32 s37, s{S_GP+1}, 0xffff
s_mov_b32 s38, {2048*1152}
s_mov_b32 s39, 0x20000
s_lshr_b32 s44, s2, 3
s_sub_u32 s44, s44, 24
s_lshl_b32 s44, s44, 2
s_sub_u32 s45, s{S_WAVE}, 4
s_add_u32 s46, s44, s45
s_mul_i32 s45, s45, 9216
s_add_u32 s45, s45, {PK}
s_and_b32 s47, s2, 7
s_mul_i32 s40, s46, {64*1152}
s_mul_i32 s41, s47, 144
s_add_u32 s40, s40, s41
""")
    for n in range(9):
        q = 16 + 3 * (n % 2)
        s(f"""
v_add_u32 v{q}, {64 * n}, v{V_LANE}
v_mul_u32_u24 v{q+1}, 7282, v{q}
v_lshrrev_b32 v{q+1}, 16, v{q+1}
v_mul_u32_u24 v{q+2}, 9, v{q+1}
v_sub_u32 v{q+2}, v{q}, v{q+2}
v_mul_u32_u24 v{q+1}, 1152, v{q+1}
s_add_u32 m0, s45, {1024 * n}
v_lshl_add_u32 v{q}, v{q+2}, 4, v{q+1}
""")
        s.vm(f"buffer_load_dwordx4 v{q}, s[36:39], s40 offen lds", "ut")
    s(f"""
v_and_b32 v22, 15, v{V_LANE}
v_lshrrev_b32 v23, 4, v{V_LANE}
v_lshrrev_b32 v24, 2, v22
v_lshl_add_u32 v24, v23, 3, v24
v_mul_u32_u24 v24, 144, v24
v_and_b32 v25, 3, v22
v_lshl_add_u32 v24, v25, 3, v24
v_add_u32 v24, s45, v24
v_lshlrev_b32 v25, 12, v22
v_lshl_add_u32 v25, v23, 4, v25
s_mul_i32 s41, s47, {72 * 4096}
s_lshl_b32 s42, s46, 7
s_add_u32 s41, s41, s42
s_add_u32 s41, s41, {WS_UT}
""")
    s.vmwait("ut")
    for blk in range(5):
        for hf in range(2):
            r = 28 + 4 * ((2 * blk + hf) % 4)
            o = hf * 32 * 144 + 32 * blk
            s.ds(f"ds_read_b64_tr_b16 v[{r}:{r+1}], v24 offset:{o}", ("u", blk, hf))
            s.ds(f"ds_read_b64_tr_b16 v[{r+2}:{r+3}], v24 offset:{o + 576}", ("u", blk, hf))
        if blk == 4: s("s_mov_b32 s42, 0x00ff00ff\ns_mov_b32 s43, 0x00ff00ff\ns_mov_b64 vcc, s[42:43]")
        for hf in range(2):
            r = 28 + 4 * ((2 * blk + hf) % 4)
            s.dswait(("u", blk, hf))
            s(f"s_add_u32 s42, s41, {blk * 16 * 4096 + 64 * hf}")
            if blk == 4: s("s_mov_b64 exec, vcc")
            s.vm(f"buffer_store_dwordx4 v[{r}:{r+3}], v25, s[{S_WS}:{S_WS+3}], s42 offen", "st")
            if blk == 4: s("s_mov_b64 exec, -1")
        s("s_nop 1")

def frag_lds(p, write):
    p(f"s_lshl_b32 s{S_T0}, s{S_J}, 12\ns_add_u32 s{S_T0}, s{S_T0}, {PK}\nv_lshl_add_u32 v16, v{V_LANE}, 4, s{S_T0}")
    for f in range(4):
        if write: p(f"ds_write_b128 v16, v[{V_WPHI+4*f}:{V_WPHI+4*f+3}] offset:{1024*f}")
        else: p(f"ds_read_b128 v[{V_WPHI+4*f}:{V_WPHI+4*f+3}], v16 offset:{1024*f}")

def phiq_base(s):
    s(f"""
s_lshl_b32 s{S_T1}, s{S_TT}, 5
s_lshl_b32 s{S_T0}, s{S_HG}, 2
s_add_u32 s{S_T1}, s{S_T1}, s{S_T0}
s_lshl_b32 s{S_T0}, s{S_J}, 1
s_add_u32 s{S_T1}, s{S_T1}, s{S_T0}
s_lshl_b32 s{S_T1}, s{S_T1}, 1
s_add_u32 s{S_T1}, s{S_T1}, s{S_I}
s_mul_i32 s{S_T1}, s{S_T1}, 2304
s_add_u32 s{S_T1}, s{S_T1}, {WS_PHIQ}
""")

class _P:
    def __init__(self, s): self.s = s
    def __call__(self, t): self.s(t)
    def vm(self, t, tag=None): self.s.vm(t, tag)

def gen_a1(st_on=False, dbg=False):
    p = Prog()
    prologue_common(p)
    stamp(p, 0, st_on)
    srds(p)
    p(f"s_cmp_ge_u32 s{S_WAVE}, {8 + NL}\ns_cbranch_scc1 L_help\ns_cmp_ge_u32 s{S_WAVE}, 8\ns_cbranch_scc1 L_loader\ns_cmp_ge_u32 s{S_WAVE}, 4\ns_cbranch_scc1 L_g1")
    head = p.text()

    p = Prog()
    p(f"""
s_lshl_b32 s{S_T0}, s{S_HG}, 2
s_lshl_b32 s{S_T1}, s{S_J}, 1
s_add_u32 s{S_T0}, s{S_T0}, s{S_T1}
s_mul_i32 s{S_SO}, s{S_T0}, 648
s_lshl_b32 s{S_T0}, s{S_WAVE}, 11
s_add_u32 m0, s{S_T0}, {PK}
v_lshlrev_b32 v16, 4, v{V_LANE}
""")
    p.vm(f"buffer_load_dwordx4 v16, s[{S_PHI}:{S_PHI+3}], s{S_SO} offen lds", "wphi")
    p(f"s_add_u32 m0, m0, 1024\ns_add_u32 s{S_SO}, s{S_SO}, 1024")
    p.vm(f"buffer_load_dwordx4 v16, s[{S_PHI}:{S_PHI+3}], s{S_SO} offen lds", "wphi")
    gemm_addr_setup(p)
    p.vmwait("wphi")
    wphi_gather(p)
    soft_setup(p, True)
    p("s_barrier")
    stamp(p, 1, st_on)
    lsk = Prog.label("nofrag")
    p(f"s_cmp_eq_u32 s{S_I}, 1\ns_cbranch_scc1 {lsk}")
    frag_lds(p, True)
    p(f"{lsk}:")
    gemm_pass(p, 0, st_on)
    s = Side()
    DA, DB = second_stage(s)
    softmax(s, DA); phik_write(s, 0)
    softmax(s, DB); phik_write(s, 1)
    v_setup(_P(s))
    s("s_waitcnt lgkmcnt(0)")
    side_iters(p, list(range(9, 18)), s.split(9, SM_W), st_on)
    gemm_pass(p, 2, st_on)
    s = Side()
    v_write(s)
    emit_items(p, s.items)
    p("s_barrier")
    stamp(p, 29, st_on)
    s = Side()
    kv_partial(s)
    emit_items(p, s.items)
    stamp(p, 30, st_on)
    stamp_dump(p, NSTAMP, st_on)
    p("s_waitcnt vmcnt(0)\ns_branch L_end")
    g0 = p.text()

    def ptrs(p):
        p(f"""
s_load_dwordx4 s[{S_GP}:{S_GP+3}], s[0:1], 32
s_load_dwordx4 s[{S_GP+4}:{S_GP+7}], s[0:1], 48
s_load_dwordx4 s[{S_GP+8}:{S_GP+11}], s[0:1], 64
s_load_dwordx2 s[42:43], s[0:1], 80
""")
    def pass_k_slices(p, sl, frags):
        for n in range(10):
            if n == 2 and frags:
                frag_lds(p, False)
                p("s_waitcnt lgkmcnt(0)")
            emit_items(p, sl[n])
            p("s_barrier")
            stamp(p, n + 1, st_on)
    def kg_slices(extra):
        s = Side(); kgen(s); kg_send(s)
        print("kgen unit cost", s.total(), "instrs", s.ninstr())
        sl = s.split(len(KG_W), KG_W)
        if EXP.startswith("loop"):
            for n in range(1, len(sl)):
                body = [it for it in sl[n] if it[0] == "i" and not it[1].startswith("s_waitcnt") and "\n" not in it[1]]
                if EXP == "loopv": body = [it for it in body if it[1].startswith("v_") and not it[1].startswith("v_mfma")]
                body = body[:28]
                lab = Prog.label("lp")
                sl[n] = [("i", "s_mov_b32 s46, 0")] + [("i", lab + ":")] + body + [("i", f"s_add_u32 s46, s46, 1\ns_cmp_lt_u32 s46, 4\ns_cbranch_scc1 {lab}")]
        if EXP == "twice":
            n = 2
            body = [it for it in sl[n] if it[0] == "i" and not it[1].startswith("s_waitcnt") and "\n" not in it[1]]
            body = [it for it in body if it[1].startswith("v_") and not it[1].startswith("v_mfma")]
            print("twice body", len(body))
            lab = Prog.label("lp")
            sl[n] = [("i", "s_mov_b32 s46, 0\ns_memtime s[90:91]")] + [("i", lab + ":")] + body + [("i", f"s_cmp_eq_u32 s46, 1\ns_cbranch_scc1 {lab}e\ns_memtime s[92:93]\ns_mov_b32 s46, 1\ns_branch {lab}\n{lab}e:\ns_memtime s[94:95]")]
        f = Side(); kg_finish(f)
        sl.append(f.items)
        sl += extra
        assert len(sl) == 10, len(sl)
        return sl
    nrest = 10 - len(KG_W) - 1
    p = Prog()
    p("L_g1:")
    ptrs(p)
    gemm_addr_setup(p)
    p(f"""
s_waitcnt lgkmcnt(0)
s_sub_u32 s{S_UNIT}, s{S_WAVE}, 4
s_cmp_ge_u32 s2, 192
s_cbranch_scc1 L_idle
""")
    kg_setup(p)
    pass_k_slices(p, kg_slices([[] for _ in range(nrest)]), True)
    p("s_branch L_g1q")
    p("L_idle:")
    p.vmq = []
    s = Side(); utrans(p, s)
    pass_k_slices(p, [[], [], []] + s.split(5) + [[], []], True)
    p("L_g1q:")
    p.vmq = []
    soft_setup(p, False)
    gemm_pass(p, 1, st_on)
    s = Side()
    phiq_base(s)
    DA, DB = second_stage(s)
    softmax(s, DA); phiq_store(s, 0)
    softmax(s, DB); phiq_store(s, 1)
    side_iters(p, list(range(18, 27)), s.split(9, SM_W), st_on)
    p("s_barrier")
    stamp(p, 29, st_on)
    stamp(p, 30, st_on)
    stamp_dump(p, NSTAMP, st_on)
    p("s_waitcnt vmcnt(0)\ns_branch L_end")
    g1 = p.text()

    p = Prog()
    p("L_help:")
    ptrs(p)
    p(f"""
s_waitcnt lgkmcnt(0)
s_sub_u32 s{S_UNIT}, s{S_WAVE}, {8 + NL - 4}
""")
    p(f"s_cmp_ge_u32 s2, 192\ns_cbranch_scc1 L_hidle")
    kg_setup(p)
    sl_kg = kg_slices([[] for _ in range(nrest)])
    nk = 10 - nrest
    def run(p, sl, n0, n1):
        for n in range(n0, n1):
            emit_items(p, sl[n])
            p("s_barrier")
            stamp(p, n + 1, st_on)
    run(p, sl_kg, 0, 10)
    p("s_branch L_hrest")
    p("L_hidle:")
    run(p, [[] for _ in range(10)], 0, 10)
    p("L_hrest:")
    for b in range(9, 27):
        p("s_barrier")
        stamp(p, b + 2, st_on)
    p("s_barrier")
    stamp(p, 29, st_on)
    stamp(p, 30, st_on)
    p.vmq = []
    stamp_dump(p, NSTAMP, st_on)
    p("s_waitcnt vmcnt(0)\ns_branch L_end")
    hl = p.text()
    return head + g0 + g1 + hl + "L_loader:\n" + gen_loader(st_on) + "L_end:\n"

KG_W = [1.2] + [1] * 8
EXP = ""
WARM = 10
SM_W = [1] * 8 + [0.3]
if __name__ == "__main__":
    import sys
    for a in sys.argv[1:]:
        if a.startswith("NL="): NL = int(a[3:])
        if a.startswith("EXP="): EXP = a[4:]
        if a.startswith("WARM="): WARM = int(a[5:])
    body = gen_a1(st_on=True, dbg="dbg" in sys.argv)
    open(f"k1{EXP}.s", "w").write(program([dict(name=KNAME, body=body, grid=256, block=512 + 64 * NL + 128, lds=LDS_END, vgpr=NVGPR)], single=True))
```

```python
from dsl import *
from k1 import WS_PART, WS_KVZ, WS_UT, WS_KR, WS_YT, KRP, WS_STAMP

CB = 12928
OC1, OU = 4160, 8320
XCH = 3 * CB
LDS2 = XCH + 3 * 8192

S_WS = 8
S_WAVE, S_E, S_R, S_CH = 24, 25, 26, 27
S_T0, S_T1, S_T2 = 28, 29, 30
V_LANE = 1
VA, VB, VY, VX = 4, 8, 9, 10
ACC = [16, 48]
FA = [80, 144]
FB = [112, 176]
NV2 = 208
NST = 8

def stamp(p, i, on):
    if on: p(f"s_memtime s[{48 + 2 * i}:{49 + 2 * i}]")

def stamp_dump(p, on):
    if not on: return
    p("s_waitcnt lgkmcnt(0)")
    p(f"s_lshl_b32 s{S_T0}, s2, 4\ns_add_u32 s{S_T0}, s{S_T0}, s{S_WAVE}\ns_lshl_b32 s{S_T0}, s{S_T0}, 7\ns_add_u32 s{S_T0}, s{S_T0}, {WS_STAMP + 0x100000}")
    p("v_mov_b32 v2, 0")
    for i in range(NST):
        p(f"v_mov_b32 v3, s{48 + 2 * i}")
        p.vm(f"buffer_store_dword v3, v2, s[{S_WS}:{S_WS+3}], s{S_T0} offen offset:{4 * i}")

def prologue(p, on):
    p(f"""
s_cmp_ge_u32 s2, 256
s_cbranch_scc1 L2_end
s_load_dwordx2 s[4:5], s[0:1], 104
v_and_b32 v{V_LANE}, 63, v0
v_lshrrev_b32 v2, 6, v0
s_and_b32 s{S_E}, s2, 7
s_lshr_b32 s{S_R}, s2, 3
v_readfirstlane_b32 s{S_WAVE}, v2
""")
    stamp(p, 0, on)
    p(f"""
s_mul_i32 s{S_CH}, s{S_E}, 72
s_mul_i32 s{S_T0}, s{S_R}, 3
s_add_u32 s{S_CH}, s{S_CH}, s{S_T0}
s_waitcnt lgkmcnt(0)
s_mov_b32 s{S_WS}, s4
s_and_b32 s{S_WS+1}, s5, 0xffff
s_mov_b32 s{S_WS+2}, 0x10000000
s_mov_b32 s{S_WS+3}, 0x20000
""")

def conv_loads(p):
    p(f"""
v_lshlrev_b32 v2, 4, v{V_LANE}
s_lshl_b32 s{S_T0}, s{S_WAVE}, 10
s_mul_i32 s{S_T1}, s{S_CH}, {KRP}
s_add_u32 s{S_T1}, s{S_T1}, s{S_T0}
s_add_u32 s{S_T1}, s{S_T1}, {WS_KR}
s_lshl_b32 s{S_T2}, s{S_CH}, 12
s_add_u32 s{S_T2}, s{S_T2}, s{S_T0}
s_add_u32 s{S_T2}, s{S_T2}, {WS_UT}
""")
    for c in range(3):
        p(f"s_add_u32 m0, s{S_T0}, {c * CB}\ns_add_u32 s31, s{S_T1}, {c * KRP}")
        p.vm(f"buffer_load_dwordx4 v2, s[{S_WS}:{S_WS+3}], s31 offen lds", "cv")
        p(f"s_add_u32 m0, s{S_T0}, {c * CB + OC1}\ns_add_u32 s31, s{S_T1}, {c * KRP + 2}")
        p.vm(f"buffer_load_dwordx4 v2, s[{S_WS}:{S_WS+3}], s31 offen lds", "cv")
        p(f"s_add_u32 m0, s{S_T0}, {c * CB + OU + 480}\ns_add_u32 s31, s{S_T2}, {c * 4096}")
        p.vm(f"buffer_load_dwordx4 v2, s[{S_WS}:{S_WS+3}], s31 offen lds", "cv")

def conv_setup(p):
    p(f"""
s_min_u32 s{S_T0}, s{S_WAVE}, 2
s_mul_i32 s{S_T0}, s{S_T0}, {CB}
v_mov_b32 v12, 0
v_mov_b32 v13, 0
v_min_u32 v2, 59, v{V_LANE}
v_lshlrev_b32 v2, 3, v2
v_add_u32 v2, s{S_T0}, v2
ds_write_b64 v2, v[12:13] offset:{OU}
v_and_b32 v2, 31, v{V_LANE}
v_lshrrev_b32 v3, 4, v2
v_mul_u32_u24 v3, {OC1 - 64}, v3
v_lshl_add_u32 v2, v2, 2, v3
v_add_u32 v2, s{S_T0}, v2
ds_write_b32 v2, v12 offset:4096
s_cmp_eq_u32 s{S_WAVE}, 3
s_cselect_b32 s{S_T0}, 0, s{S_T0}
v_and_b32 v2, 15, v{V_LANE}
v_lshrrev_b32 v3, 4, v{V_LANE}
v_lshlrev_b32 v11, 5, v2
v_lshl_add_u32 v11, v3, 4, v11
v_add_u32 v{VB}, s{S_T0}, v11
v_add_u32 v{VB}, {OU}, v{VB}
v_lshlrev_b32 v11, 3, v3
v_sub_u32 v11, v11, v2
v_and_b32 v12, 1, v2
v_xor_b32 v12, 1, v12
v_sub_u32 v11, v11, v12
v_lshlrev_b32 v11, 1, v11
v_mul_u32_u24 v12, {OC1}, v12
v_add3_u32 v11, v11, v12, s{S_T0}
""")
    for q in range(4):
        p(f"v_add_u32 v{VA+q}, {2 * 2031 - 1024 * q - 960}, v11")
    p(f"""
v_lshlrev_b32 v11, 5, v2
v_lshl_add_u32 v{VY}, v3, 3, v11
s_min_u32 s{S_T0}, s{S_WAVE}, 2
s_lshl_b32 s{S_T0}, s{S_T0}, 13
s_add_u32 s{S_T0}, s{S_T0}, {XCH}
s_cmp_eq_u32 s{S_WAVE}, 3
s_cselect_b32 s{S_T0}, {XCH}, s{S_T0}
v_lshl_add_u32 v{VX}, v{V_LANE}, 4, s{S_T0}
""")

def class_reads(r, buf):
    out = []
    for d in range(8):
        out.append(f"ds_read_b128 v[{FB[buf]+4*d}:{FB[buf]+4*d+3}], v{VB} offset:{448 + 512 * d - 64 * r}")
    for a in range(8):
        o = 16 * (7 - r) + (128 if a % 2 == 0 else 0)
        out.append(f"ds_read2_b32 v[{FA[buf]+4*a}:{FA[buf]+4*a+1}], v{VA + a // 2} offset0:{o} offset1:{o+1}")
        out.append(f"ds_read2_b32 v[{FA[buf]+4*a+2}:{FA[buf]+4*a+3}], v{VA + a // 2} offset0:{o+2} offset1:{o+3}")
    return out

def conv_class(p, buf, acc, fresh, nxt, late=(), pending=0):
    nxt = list(nxt); late = list(late)
    p(f"s_waitcnt lgkmcnt({pending})")
    seen = set()
    n = 0
    for a in range(8):
        for d in range(8 - a):
            t = a + d
            c = "0" if (fresh and t not in seen) else f"v[{acc+4*t}:{acc+4*t+3}]"
            seen.add(t)
            p(f"v_mfma_f32_16x16x32_bf16 v[{acc+4*t}:{acc+4*t+3}], v[{FA[buf]+4*a}:{FA[buf]+4*a+3}], v[{FB[buf]+4*d}:{FB[buf]+4*d+3}], {c}")
            n += 1
            if nxt: p(nxt.pop(0))
            elif late and n >= 26: p(late.pop(0))
    assert not nxt and not late

def partial_writes(acc):
    return [f"ds_write_b128 v{VX}, v[{acc+4*t}:{acc+4*t+3}] offset:{1024*t}" for t in range(8)]

def conv_main(p, on):
    for x in class_reads(0, 0): p(x)
    for k in range(6):
        conv_class(p, k & 1, ACC[0], k == 0, class_reads(k + 1, (k + 1) & 1) if k < 5 else [])
    stamp(p, 3, on)

def conv_help(p, on):
    for x in class_reads(6, 0): p(x)
    pend = 0
    for c in range(3):
        late = partial_writes(ACC[(c - 1) & 1]) if c > 0 else []
        conv_class(p, 0, ACC[c & 1], True, class_reads(7, 1), late=late)
        if c > 0: p(f"v_add_u32 v{VX}, 8192, v{VX}")
        if c < 2:
            for q in range(4): p(f"v_add_u32 v{VA+q}, {CB}, v{VA+q}")
            p(f"v_add_u32 v{VB}, {CB}, v{VB}")
        conv_class(p, 1, ACC[c & 1], False, class_reads(6, 0) if c < 2 else [], pending=8 if c > 0 else 0)
    p("s_nop 7")
    for x in partial_writes(ACC[0]): p(x)
    stamp(p, 3, on)
    p("s_waitcnt lgkmcnt(0)")

def conv_finish(p):
    acc, t = ACC[0], FA[0]
    for k in range(8): p(f"ds_read_b128 v[{t+4*k}:{t+4*k+3}], v{VX} offset:{1024*k}")
    p(f"""
s_add_u32 s{S_T0}, s{S_CH}, s{S_WAVE}
s_lshl_b32 s{S_T0}, s{S_T0}, 12
s_add_u32 s{S_T0}, s{S_T0}, {WS_YT}
""")
    for k in range(8):
        p(f"s_waitcnt lgkmcnt({7 - k})")
        for i in range(4): p(f"v_add_f32 v{acc+4*k+i}, v{acc+4*k+i}, v{t+4*k+i}")
        c = FB[0] + 2 * k
        p(f"v_cvt_pk_bf16_f32 v{c}, v{acc+4*k}, v{acc+4*k+1}\nv_cvt_pk_bf16_f32 v{c+1}, v{acc+4*k+2}, v{acc+4*k+3}")
        p.vm(f"buffer_store_dwordx2 v[{c}:{c+1}], v{VY}, s[{S_WS}:{S_WS+3}], s{S_T0} offen offset:{512*k}", "st")

def reduce_part(p):
    L, A = 16, 64
    p(f"""
s_sub_u32 s{S_T0}, s{S_R}, 24
s_lshl_b32 s{S_T0}, s{S_T0}, 3
s_add_u32 s{S_T0}, s{S_T0}, s{S_E}
s_lshr_b32 s{S_T1}, s{S_T0}, 1
s_and_b32 s{S_T0}, s{S_T0}, 1
s_mul_i32 s{S_T0}, s{S_T0}, 720
s_mul_i32 s33, s{S_T1}, 1440
s_add_u32 s33, s33, s{S_T0}
s_add_u32 s33, s33, {WS_KVZ}
s_lshr_b32 s{S_T2}, s{S_T1}, 2
s_lshl_b32 s{S_T2}, s{S_T2}, 5
s_lshl_b32 s31, s{S_WAVE}, 3
s_add_u32 s{S_T2}, s{S_T2}, s31
s_lshl_b32 s{S_T2}, s{S_T2}, 2
s_and_b32 s{S_T1}, s{S_T1}, 3
s_add_u32 s{S_T2}, s{S_T2}, s{S_T1}
s_mul_i32 s{S_T2}, s{S_T2}, 1440
s_add_u32 s{S_T2}, s{S_T2}, s{S_T0}
s_add_u32 s{S_T2}, s{S_T2}, {WS_PART}
v_min_u32 v2, 44, v{V_LANE}
v_lshlrev_b32 v2, 4, v2
""")
    for k in range(8):
        p(f"s_add_u32 s31, s{S_T2}, {k * 4 * 1440}")
        p.vm(f"buffer_load_dwordx4 v[{L+4*k}:{L+4*k+3}], v2, s[{S_WS}:{S_WS+3}], s31 offen", ("pt", k))
    for k in range(8):
        p.vmwait([("pt", k)])
        for i in range(4):
            if k == 0:
                p(f"v_lshlrev_b32 v{A+2*i}, 16, v{L+i}\nv_and_b32 v{A+2*i+1}, 0xffff0000, v{L+i}")
            else:
                p(f"v_lshlrev_b32 v12, 16, v{L+4*k+i}\nv_and_b32 v13, 0xffff0000, v{L+4*k+i}")
                p(f"v_add_f32 v{A+2*i}, v{A+2*i}, v12\nv_add_f32 v{A+2*i+1}, v{A+2*i+1}, v13")
    p(f"""
v_lshlrev_b32 v3, 4, v{V_LANE}
s_lshl_b32 s31, s{S_WAVE}, 11
v_add_u32 v4, s31, v3
ds_write_b128 v4, v[{A}:{A+3}]
ds_write_b128 v4, v[{A+4}:{A+7}] offset:1024
s_waitcnt lgkmcnt(0)
s_barrier
s_cmp_lg_u32 s{S_WAVE}, 0
s_cbranch_scc1 L2_rdone
""")
    for w in range(1, 4):
        p(f"ds_read_b128 v[{L+8*w}:{L+8*w+3}], v3 offset:{2048*w}\nds_read_b128 v[{L+8*w+4}:{L+8*w+7}], v3 offset:{2048*w+1024}")
    for w in range(1, 4):
        p(f"s_waitcnt lgkmcnt({2 * (3 - w)})")
        for i in range(8): p(f"v_add_f32 v{A+i}, v{A+i}, v{L+8*w+i}")
    for i in range(4): p(f"v_cvt_pk_bf16_f32 v{L+i}, v{A+2*i}, v{A+2*i+1}")
    p(f"v_cmp_gt_u32 vcc, 45, v{V_LANE}\ns_and_saveexec_b64 s[34:35], vcc")
    p.vm(f"buffer_store_dwordx4 v[{L}:{L+3}], v2, s[{S_WS}:{S_WS+3}], s33 offen", "st")
    p("s_mov_b64 exec, s[34:35]\nL2_rdone:")

def gen_k2(on=False):
    p = Prog()
    prologue(p, on)
    p(f"s_cmp_ge_u32 s{S_R}, 24\ns_cbranch_scc1 L2_red")
    conv_loads(p)
    stamp(p, 1, on)
    conv_setup(p)
    p("s_waitcnt vmcnt(0) lgkmcnt(0)\ns_barrier")
    stamp(p, 2, on)
    p(f"s_cmp_eq_u32 s{S_WAVE}, 3\ns_cbranch_scc1 L2_help")
    conv_main(p, on)
    p("s_barrier")
    stamp(p, 4, on)
    conv_finish(p)
    stamp(p, 5, on)
    p("s_branch L2_fin")
    p("L2_help:")
    conv_help(p, on)
    p("s_barrier")
    p("s_branch L2_fin")
    p("L2_red:")
    p.vmq = []
    reduce_part(p)
    p("L2_fin:")
    p("s_waitcnt vmcnt(0)")
    stamp(p, 6, on)
    stamp_dump(p, on)
    p("s_waitcnt vmcnt(0)\nL2_end:")
    return p.text()

if __name__ == "__main__":
    import k1
    b1 = k1.gen_a1(st_on=True)
    b2 = gen_k2(True)
    ks = [dict(name="k1_kernel", body=b1, grid=256, block=768, lds=k1.LDS_END, vgpr=k1.NVGPR),
          dict(name="k2_kernel", body=b2, grid=256, block=256, lds=LDS2, vgpr=NV2)]
    open("k12.s", "w").write(program(ks))
```

```python
from dsl import *
from k1 import WS_PHIQ, WS_KVZ, WS_YT, WS_STAMP

IMG = 0
WO = 73728
LDS3 = WO + 83 * 1008

S_WS, S_WOP, S_OUT = 8, 12, 16
S_WAVE, S_E, S_R, S_TT, S_CT = 24, 25, 26, 27, 28
S_T0, S_T1, S_T2, S_T3 = 29, 30, 31, 32
S_M63, S_LO, S_HI = 34, 36, 38
V_LANE = 1
PQ, PD, KA, K3, ACC = 16, 144, 160, 192, (208, 224)
OUTR, LO, DEN = 240, 244, 252
NV3 = 256
NST = 12

def stamp(p, i, on):
    if on: p(f"s_memtime s[{48 + 2 * i}:{49 + 2 * i}]")

def stamp_dump(p, on):
    if not on: return
    p("s_waitcnt lgkmcnt(0)")
    p(f"s_lshl_b32 s{S_T0}, s2, 4\ns_add_u32 s{S_T0}, s{S_T0}, s{S_WAVE}\ns_lshl_b32 s{S_T0}, s{S_T0}, 7\ns_add_u32 s{S_T0}, s{S_T0}, {WS_STAMP + 0x200000}")
    p("v_mov_b32 v2, 0")
    for i in range(NST):
        p(f"v_mov_b32 v3, s{48 + 2 * i}")
        p.vm(f"buffer_store_dword v3, v2, s[{S_WS}:{S_WS+3}], s{S_T0} offen offset:{4 * i}")

def prologue(p, on):
    p(f"""
s_cmp_ge_u32 s2, 256
s_cbranch_scc1 L3_end
s_load_dwordx2 s[4:5], s[0:1], 104
s_load_dwordx2 s[6:7], s[0:1], 24
s_load_dwordx2 s[20:21], s[0:1], 88
v_and_b32 v{V_LANE}, 63, v0
v_lshrrev_b32 v2, 6, v0
s_and_b32 s{S_E}, s2, 7
s_lshr_b32 s{S_R}, s2, 3
v_readfirstlane_b32 s{S_WAVE}, v2
""")
    stamp(p, 0, on)
    p(f"""
s_lshl_b32 s{S_TT}, s{S_E}, 2
s_and_b32 s{S_T0}, s{S_R}, 3
s_add_u32 s{S_TT}, s{S_TT}, s{S_T0}
s_lshr_b32 s{S_CT}, s{S_R}, 2
s_mov_b32 s{S_M63}, -1
s_mov_b32 s{S_M63+1}, 0x7fffffff
s_mov_b32 s{S_LO}, -1
s_mov_b32 s{S_LO+1}, 0
s_mov_b32 s{S_HI}, 0
s_mov_b32 s{S_HI+1}, -1
s_waitcnt lgkmcnt(0)
s_mov_b32 s{S_WS}, s4
s_and_b32 s{S_WS+1}, s5, 0xffff
s_mov_b32 s{S_WS+2}, 0x10000000
s_mov_b32 s{S_WS+3}, 0x20000
s_mov_b32 s{S_WOP}, s6
s_and_b32 s{S_WOP+1}, s7, 0xffff
s_mov_b32 s{S_WOP+2}, {576*1152}
s_mov_b32 s{S_WOP+3}, 0x20000
s_mov_b32 s{S_OUT}, s20
s_and_b32 s{S_OUT+1}, s21, 0xffff
s_mov_b32 s{S_OUT+2}, {2048*2304}
s_mov_b32 s{S_OUT+3}, 0x20000
""")

def div9(p, q, rem, src, tmp):
    p(f"v_mul_u32_u24 v{q}, 7282, v{src}\nv_lshrrev_b32 v{q}, 16, v{q}\nv_mul_u32_u24 v{tmp}, 9, v{q}\nv_sub_u32 v{rem}, v{src}, v{tmp}")

def slot_of(p, dst, c, par, tmp):
    p(f"""
v_lshlrev_b32 v{dst}, 2, v{c}
v_sub_u32 v{dst}, v{dst}, v{par}
v_add_u32 v{dst}, 2, v{dst}
v_mul_u32_u24 v{tmp}, 57, v{dst}
v_lshrrev_b32 v{tmp}, 9, v{tmp}
v_mul_u32_u24 v{tmp}, 9, v{tmp}
v_sub_u32 v{dst}, v{dst}, v{tmp}
""")

def wo_loads(p, nw, wreg):
    a, b, c, t = 2, 3, 4, 5
    div9(p, a, b, V_LANE, t)
    p(f"""
v_add_u32 v{c}, s{wreg}, v{a}
v_and_b32 v{c}, 1, v{c}
v_add3_u32 v{c}, v{b}, v{c}, 7
v_mul_u32_u24 v{c}, 7, v{c}
v_mul_u32_u24 v{t}, 57, v{c}
v_lshrrev_b32 v{t}, 9, v{t}
v_mul_u32_u24 v{t}, 9, v{t}
v_sub_u32 v{c}, v{c}, v{t}
v_mul_u32_u24 v{a}, 1152, v{a}
v_lshl_add_u32 v{a}, v{c}, 4, v{a}
s_mul_i32 s{S_T0}, s{wreg}, {7*1152}
s_mul_i32 s{S_T1}, s{S_CT}, 144
s_add_u32 s{S_T0}, s{S_T0}, s{S_T1}
s_mul_i32 s{S_T1}, s{wreg}, 1008
s_mov_b64 exec, s[{S_M63}:{S_M63+1}]
""")
    n = -(-83 // nw)
    lsk = Prog.label("wo_sk")
    for j in range(n):
        if nw * j + nw - 1 > 82:
            p(f"s_cmp_gt_u32 s{wreg}, {82 - nw * j}\ns_cbranch_scc1 {lsk}")
        p(f"s_add_u32 m0, s{S_T1}, {WO + nw * j * 1008}\ns_add_u32 s{S_T2}, s{S_T0}, {nw * j * 7 * 1152}")
        p.vm(f"buffer_load_dwordx4 v{a}, s[{S_WOP}:{S_WOP+3}], s{S_T2} offen lds", "wo")
    p(f"{lsk}:\ns_mov_b64 exec, -1")

def tile_lane(p, g, tok, pc, tmp):
    p(f"s_lshl_b32 s{S_T0}, s{g}, 6\nv_add_u32 v{tmp}, s{S_T0}, v{V_LANE}")
    div9(p, tok, pc, tmp, tmp + 1)

BIMG = 9216
def bfinal_loads(p, g, R, A, flags=""):
    p(f"""
v_lshrrev_b32 v{A}, 3, v{V_LANE}
s_lshl_b32 s{S_T0}, s{g}, 3
v_add_u32 v{A}, s{S_T0}, v{A}
v_and_b32 v{A+1}, 7, v{V_LANE}
v_lshlrev_b32 v{A+2}, 12, v{A}
v_lshl_add_u32 v{A+2}, v{A+1}, 4, v{A+2}
s_mul_i32 s{S_T0}, s{S_E}, {72*4096}
s_lshl_b32 s{S_T1}, s{S_R}, 7
s_add_u32 s{S_T0}, s{S_T0}, s{S_T1}
s_add_u32 s{S_T0}, s{S_T0}, {WS_YT}
""")
    p.vm(f"buffer_load_dwordx4 v[{R}:{R+3}], v{A+2}, s[{S_WS}:{S_WS+3}], s{S_T0} offen {flags}", ("bf", R))
    p(f"""
v_bfe_u32 v{A+2}, v{A}, 1, 1
v_bfe_u32 v{A+3}, v{A}, 3, 1
v_lshl_add_u32 v{A+2}, v{A+3}, 1, v{A+2}
v_lshlrev_b32 v{A+2}, 1, v{A+2}
v_xor_b32 v{A+1}, v{A+1}, v{A+2}
v_lshlrev_b32 v{A}, 7, v{A}
v_lshl_add_u32 v{A}, v{A+1}, 4, v{A}
""")

def bfinal_stage(p, R, A):
    p.vmwait([("bf", R)])
    p(f"ds_write_b128 v{A}, v[{R}:{R+3}] offset:{BIMG}")

def bfinal_unit(p, last, R):
    a, b, c, d = R + 4, R + 5, R + 6, R + 7
    p(f"v_and_b32 v{a}, 15, v{V_LANE}\nv_lshrrev_b32 v{b}, 4, v{V_LANE}\nv_lshrrev_b32 v{c}, 2, v{a}")
    if not last:
        p(f"""
s_lshr_b32 s{S_T0}, s{S_WAVE}, 2
s_lshl_b32 s{S_T0}, s{S_T0}, 5
s_and_b32 s{S_T1}, s{S_WAVE}, 3
v_lshl_add_u32 v{c}, v{b}, 3, v{c}
v_add_u32 v{c}, s{S_T0}, v{c}
v_bfe_u32 v{d}, v{a}, 1, 1
s_lshl_b32 s{S_T3}, s{S_T1}, 1
v_add_u32 v{d}, s{S_T3}, v{d}
""")
    else:
        p(f"""
v_add_u32 v{c}, 64, v{c}
v_bfe_u32 v{d}, v{a}, 1, 1
v_lshl_add_u32 v{d}, v{b}, 1, v{d}
""")
    p(f"""
v_bfe_u32 v{R}, v{c}, 1, 1
v_bfe_u32 v{R+1}, v{c}, 3, 1
v_lshl_add_u32 v{R}, v{R+1}, 1, v{R}
v_lshlrev_b32 v{R}, 1, v{R}
v_xor_b32 v{d}, v{d}, v{R}
v_lshlrev_b32 v{c}, 7, v{c}
v_lshl_add_u32 v{c}, v{d}, 4, v{c}
v_and_b32 v{d}, 1, v{a}
v_lshl_add_u32 v{c}, v{d}, 3, v{c}
ds_read_b64_tr_b16 v[{R}:{R+1}], v{c} offset:{BIMG}
ds_read_b64_tr_b16 v[{R+2}:{R+3}], v{c} offset:{BIMG + 512}
""")
    if not last:
        p(f"""
s_lshl_b32 s{S_T1}, s{S_T1}, 4
v_add_u32 v{a}, s{S_T1}, v{a}
v_mul_u32_u24 v{a}, 2304, v{a}
v_lshl_add_u32 v{a}, v{b}, 4, v{a}
s_lshl_b32 s{S_T0}, s{S_T0}, 1
""")
    else:
        p(f"""
v_lshl_add_u32 v{a}, v{b}, 4, v{a}
v_mul_u32_u24 v{a}, 2304, v{a}
s_mov_b32 s{S_T0}, 128
""")
    p(f"""
s_mul_i32 s{S_T1}, s{S_R}, {64*2304}
s_add_u32 s{S_T0}, s{S_T0}, s{S_T1}
s_mul_i32 s{S_T1}, s{S_E}, 144
s_add_u32 s{S_T0}, s{S_T0}, s{S_T1}
s_add_u32 s{S_T0}, s{S_T0}, 1152
s_waitcnt lgkmcnt(0)
""")
    p.vm(f"buffer_store_dwordx4 v[{R}:{R+3}], v{a}, s[{S_OUT}:{S_OUT+3}], s{S_T0} offen", "st")

V_Q16, V_Q4, V_KS, V_KS4, V_IW, V_LW = 2, 3, 4, 5, 6, 7
S_PQB, S_KVB = 40, 41
def ostage_setup(p, wreg):
    p(f"""
v_lshlrev_b32 v{V_Q16}, 4, v{V_LANE}
v_lshlrev_b32 v{V_Q4}, 2, v{V_LANE}
v_and_b32 v8, 31, v{V_LANE}
v_lshrrev_b32 v9, 5, v{V_LANE}
v_min_u32 v10, 19, v8
v_mul_u32_u24 v9, 20, v9
v_add_u32 v10, v10, v9
v_lshlrev_b32 v{V_KS}, 4, v10
v_lshlrev_b32 v{V_KS4}, 2, v10
s_lshl_b32 s{S_T0}, s{S_TT}, 5
s_lshl_b32 s{S_T1}, s{wreg}, 3
s_add_u32 s{S_T0}, s{S_T0}, s{S_T1}
s_mul_i32 s{S_PQB}, s{S_T0}, {2*2304}
s_add_u32 s{S_PQB}, s{S_PQB}, {WS_PHIQ}
s_mul_i32 s{S_KVB}, s{S_T1}, 1440
s_add_u32 s{S_KVB}, s{S_KVB}, {WS_KVZ}
s_lshl_b32 s{S_T0}, s{wreg}, 14
s_add_u32 s{S_T0}, s{S_T0}, {IMG}
v_add_u32 v{V_IW}, s{S_T0}, v{V_Q16}
s_lshl_b32 s{S_T0}, s{wreg}, 11
s_add_u32 s{S_T0}, s{S_T0}, {IMG + 32 * 2048}
v_lshlrev_b32 v{V_LW}, 4, v8
v_add_u32 v{V_LW}, s{S_T0}, v{V_LW}
""")
    for q in range(4):
        for r in range(4):
            if r != q: p(f"v_mov_b32 v{K3+4*q+r}, 0")

def phiq_loads(p, hl):
    for i in range(2):
        p(f"s_add_u32 s{S_T2}, s{S_PQB}, {(2 * hl + i) * 2304}")
        r = PQ + 16 * hl + 8 * i
        p.vm(f"buffer_load_dwordx4 v[{r}:{r+3}], v{V_Q16}, s[{S_WS}:{S_WS+3}], s{S_T2} offen", ("pq", hl))
        p.vm(f"buffer_load_dwordx4 v[{r+4}:{r+7}], v{V_Q16}, s[{S_WS}:{S_WS+3}], s{S_T2} offen offset:1024", ("pq", hl))
        p.vm(f"buffer_load_dword v{PD + 4 * (2 * (hl >> 2) + i) + (hl & 3)}, v{V_Q4}, s[{S_WS}:{S_WS+3}], s{S_T2} offen offset:2048", ("pq", hl))

def kvz_loads(p, hl, flags=""):
    q = hl & 3
    p(f"s_add_u32 s{S_T2}, s{S_KVB}, {hl * 1440}")
    p.vm(f"buffer_load_dwordx4 v[{KA+8*q}:{KA+8*q+3}], v{V_KS}, s[{S_WS}:{S_WS+3}], s{S_T2} offen {flags}", ("kv", hl))
    p.vm(f"buffer_load_dwordx4 v[{KA+8*q+4}:{KA+8*q+7}], v{V_KS}, s[{S_WS}:{S_WS+3}], s{S_T2} offen offset:640 {flags}", ("kv", hl))
    p.vm(f"buffer_load_dword v{K3+4*q+q}, v{V_KS4}, s[{S_WS}:{S_WS+3}], s{S_T2} offen offset:1280 {flags}", ("kv", hl))

def o_mfmas(hl, i):
    q = hl & 3
    acc = ACC[i]
    r = PQ + 16 * hl + 8 * i
    d = PD + 4 * (2 * (hl >> 2) + i)
    return [f"v_mfma_f32_32x32x16_bf16 v[{acc}:{acc+15}], v[{KA+8*q}:{KA+8*q+3}], v[{r}:{r+3}], 0",
            f"v_mfma_f32_32x32x16_bf16 v[{acc}:{acc+15}], v[{KA+8*q+4}:{KA+8*q+7}], v[{r+4}:{r+7}], v[{acc}:{acc+15}]",
            f"v_mfma_f32_32x32x16_bf16 v[{acc}:{acc+15}], v[{K3+4*q}:{K3+4*q+3}], v[{d}:{d+3}], v[{acc}:{acc+15}]"]

def o_epilogue(hl, i):
    acc = ACC[i]
    o = OUTR
    t = [f"v_cndmask_b32 v{DEN}, v{acc+10}, v{acc+8}, s[{S_HI}:{S_HI+1}]",
         f"v_add_f32 v{DEN}, 0x358637bd, v{DEN}",
         f"v_rcp_f32 v{DEN}, v{DEN}",
         "s_nop 0"]
    for r in range(10): t.append(f"v_mul_f32 v{acc+r}, v{acc+r}, v{DEN}")
    for r in range(4): t.append(f"v_cvt_pk_bf16_f32 v{o+r}, v{acc+2*r}, v{acc+2*r+1}")
    t.append(f"v_cvt_pk_bf16_f32 v{LO + 4 * i + (hl & 3)}, v{acc+8}, v{acc+9}")
    t.append(f"ds_write_b128 v{V_IW}, v[{o}:{o+3}] offset:{hl * 2048 + i * 1024}")
    if hl & 3 == 3:
        t.append(f"s_mov_b64 exec, s[{S_LO}:{S_LO+1}]")
        t.append(f"ds_write_b128 v{V_LW}, v[{LO+4*i}:{LO+4*i+3}] offset:{i * 1024 + (hl >> 2) * 512}")
        t.append("s_mov_b64 exec, -1")
    return t

def ostage(p, on, kv_first):
    units = [(hl, i) for hl in range(8) for i in range(2)]
    def need(hl):
        p.vmwait([("kv", hl), ("pq", hl)])
    need(0)
    for x in o_mfmas(0, 0): p(x)
    p("s_nop 7\ns_nop 2")
    for n, (hl, i) in enumerate(units):
        nx = units[n + 1] if n + 1 < len(units) else None
        m = []
        if nx:
            if nx[1] == 0: need(nx[0])
            m = o_mfmas(*nx)
        else:
            p("s_nop 7\ns_nop 7")
        ep = o_epilogue(hl, i)
        if m:
            cuts = (0, 4, 9)
            for k in range(3):
                p(m[k])
                for x in ep[cuts[k]:cuts[k + 1] if k < 2 else len(ep)]: p(x)
        else:
            for x in ep: p(x)
        if nx and nx[1] == 1 and nx[0] + 4 < 8:
            kvz_loads(p, nx[0] + 4)
    p("s_waitcnt lgkmcnt(0)")

GB = [(16, 20), (24, 28), (32, 36)]
GACC = 40
V_OB, V_OB2, V_WM, V_WM2, V_WL, V_WL2 = 2, 3, 4, 5, 6, 7
def gemm_main_setup(p):
    p(f"""
s_and_b32 s{S_T0}, s{S_WAVE}, 1
s_lshl_b32 s{S_T0}, s{S_T0}, 10
v_lshl_add_u32 v{V_OB}, v{V_LANE}, 4, s{S_T0}
v_add_u32 v{V_OB2}, 0x10000, v{V_OB}
v_bfe_u32 v8, v{V_LANE}, 4, 1
v_bfe_u32 v9, v{V_LANE}, 1, 1
v_lshl_add_u32 v8, v8, 1, v9
s_lshr_b32 s{S_T0}, s{S_WAVE}, 1
s_mul_i32 s{S_T0}, s{S_T0}, 5
v_add_u32 v8, s{S_T0}, v8
v_bfe_u32 v9, v{V_LANE}, 2, 2
v_and_b32 v10, 1, v9
""")
    slot_of(p, 11, 8, 10, 12)
    p(f"""
v_and_b32 v12, 1, v{V_LANE}
v_lshlrev_b32 v12, 3, v12
v_lshl_add_u32 v11, v11, 4, v12
v_add_u32 v11, {WO}, v11
v_lshrrev_b32 v12, 5, v{V_LANE}
v_lshl_add_u32 v13, v12, 2, v9
v_mul_u32_u24 v13, 144, v13
v_add_u32 v{V_WM}, v13, v11
v_add_u32 v{V_WM2}, {16 * 2592}, v{V_WM}
v_mul_u32_u24 v13, 72, v12
v_lshrrev_b32 v14, 1, v9
v_mul_u32_u24 v14, 18, v14
v_add3_u32 v13, v13, v14, v10
v_add_u32 v13, 16, v13
v_mul_u32_u24 v13, 144, v13
v_add_u32 v{V_WL}, v13, v11
v_add_u32 v{V_WL2}, {36 * 144}, v{V_WL}
""")

def gemm_main_reads(s, buf):
    B, A = GB[buf]
    out = [f"ds_read_b128 v[{B}:{B+3}], v{V_OB} offset:{IMG + s * 2048}" if s < 32 else f"ds_read_b128 v[{B}:{B+3}], v{V_OB2} offset:{IMG + (s - 32) * 2048}"]
    if s < 32:
        v, o = (V_WM, s * 2592) if s < 16 else (V_WM2, (s - 16) * 2592)
        out.append(f"ds_read_b64_tr_b16 v[{A}:{A+1}], v{v} offset:{o}")
        out.append(f"ds_read_b64_tr_b16 v[{A+2}:{A+3}], v{v} offset:{o + 8 * 144}")
    else:
        o = (s - 32) * 8 * 18 * 144
        out.append(f"ds_read_b64_tr_b16 v[{A}:{A+1}], v{V_WL} offset:{o}")
        out.append(f"ds_read_b64_tr_b16 v[{A+2}:{A+3}], v{V_WL2} offset:{o}")
    return out

def gemm_main(p):
    for s in (0, 1):
        for x in gemm_main_reads(s, s): p(x)
    for s in range(36):
        p(f"s_waitcnt lgkmcnt({3 if s < 35 else 0})")
        B, A = GB[s % 3]
        c = "0" if s == 0 else f"v[{GACC}:{GACC+15}]"
        p(f"v_mfma_f32_32x32x16_bf16 v[{GACC}:{GACC+15}], v[{A}:{A+3}], v[{B}:{B+3}], {c}")
        if s + 2 < 36:
            for x in gemm_main_reads(s + 2, (s + 2) % 3): p(x)

def gemm_rem_setup(p):
    p(f"""
s_sub_u32 s{S_T0}, s{S_WAVE}, 4
s_lshr_b32 s{S_T1}, s{S_T0}, 1
s_lshl_b32 s{S_T1}, s{S_T1}, 10
s_and_b32 s{S_T0}, s{S_T0}, 1
s_lshl_b32 s{S_T0}, s{S_T0}, 8
s_add_u32 s{S_T0}, s{S_T0}, s{S_T1}
v_and_b32 v8, 15, v{V_LANE}
v_lshrrev_b32 v9, 4, v{V_LANE}
v_lshrrev_b32 v10, 1, v9
v_and_b32 v11, 1, v9
v_lshlrev_b32 v12, 11, v10
v_lshl_add_u32 v12, v11, 9, v12
v_lshl_add_u32 v12, v8, 4, v12
v_add_u32 v{V_OB}, s{S_T0}, v12
v_add_u32 v{V_OB2}, 0x10000, v{V_OB}
v_bfe_u32 v12, v{V_LANE}, 2, 2
v_and_b32 v13, 1, v12
v_lshlrev_b32 v14, 3, v13
v_sub_u32 v14, v14, v13
v_add_u32 v14, v14, v13
v_and_b32 v15, 1, v{V_LANE}
v_lshlrev_b32 v15, 3, v15
v_lshl_add_u32 v14, v14, 4, v15
v_add_u32 v14, {WO}, v14
v_mul_u32_u24 v15, 18, v10
v_lshl_add_u32 v15, v11, 2, v15
v_add_u32 v15, v15, v12
v_mul_u32_u24 v15, 144, v15
v_add_u32 v{V_WM}, v15, v14
v_add_u32 v{V_WM2}, {16 * 2592}, v{V_WM}
v_mul_u32_u24 v15, 144, v10
v_mul_u32_u24 v8, 72, v11
v_add_u32 v15, v15, v8
v_lshrrev_b32 v8, 1, v12
v_mul_u32_u24 v8, 18, v8
v_add3_u32 v15, v15, v8, v13
v_add_u32 v15, 16, v15
v_mul_u32_u24 v15, 144, v15
v_add_u32 v{V_WL}, v15, v14
""")

def gemm_rem_reads(z, buf):
    B, A = GB[buf]
    s = 2 * z
    out = [f"ds_read_b128 v[{B}:{B+3}], v{V_OB} offset:{IMG + s * 2048}" if s < 32 else f"ds_read_b128 v[{B}:{B+3}], v{V_OB2} offset:{IMG + (s - 32) * 2048}"]
    if s < 32:
        v, o = (V_WM, s * 2592) if s < 16 else (V_WM2, (s - 16) * 2592)
        out.append(f"ds_read_b64_tr_b16 v[{A}:{A+1}], v{v} offset:{o}")
        out.append(f"ds_read_b64_tr_b16 v[{A+2}:{A+3}], v{v} offset:{o + 8 * 144}")
    else:
        o = (z - 16) * 288 * 144
        out.append(f"ds_read_b64_tr_b16 v[{A}:{A+1}], v{V_WL} offset:{o}")
        out.append(f"ds_read_b64_tr_b16 v[{A+2}:{A+3}], v{V_WL} offset:{o + 36 * 144}")
    return out

def gemm_rem(p):
    for z in (0, 1):
        for x in gemm_rem_reads(z, z): p(x)
    for z in range(18):
        p(f"s_waitcnt lgkmcnt({3 if z < 17 else 0})")
        B, A = GB[z % 3]
        c = "0" if z == 0 else f"v[{GACC}:{GACC+3}]"
        p(f"v_mfma_f32_16x16x32_bf16 v[{GACC}:{GACC+3}], v[{A}:{A+3}], v[{B}:{B+3}], {c}")
        if z + 2 < 18:
            for x in gemm_rem_reads(z + 2, (z + 2) % 3): p(x)

def out_stage_main(p):
    p(f"""
v_and_b32 v8, 31, v{V_LANE}
s_and_b32 s{S_T0}, s{S_WAVE}, 1
s_lshl_b32 s{S_T0}, s{S_T0}, 5
v_add_u32 v8, s{S_T0}, v8
v_mul_u32_u24 v8, 144, v8
v_lshrrev_b32 v9, 5, v{V_LANE}
v_lshl_add_u32 v8, v9, 3, v8
s_lshr_b32 s{S_T0}, s{S_WAVE}, 1
s_mul_i32 s{S_T0}, s{S_T0}, 80
v_add_u32 v8, s{S_T0}, v8
s_nop 7
""")
    for r in range(8): p(f"v_cvt_pk_bf16_f32 v{16+r}, v{GACC+2*r}, v{GACC+2*r+1}")
    p("s_barrier")
    for g in range(4): p(f"ds_write_b64 v8, v[{16+2*g}:{17+2*g}] offset:{16*g}")
    if "nobf" not in EXP:
        lsk = Prog.label("bs")
        p(f"ds_write_b128 v{BR+4}, v[{BR}:{BR+3}] offset:{BIMG}")
        p(f"ds_write_b128 v{BR+12}, v[{BR+8}:{BR+11}] offset:{BIMG}")
        p(f"s_cmp_lg_u32 s{S_WAVE}, 0\ns_cbranch_scc1 {lsk}")
        p(f"ds_write_b128 v{BR+20}, v[{BR+16}:{BR+19}] offset:{BIMG}")
        p(f"{lsk}:")

def out_stage_rem(p):
    p(f"""
v_and_b32 v8, 15, v{V_LANE}
s_sub_u32 s{S_T0}, s{S_WAVE}, 4
s_lshl_b32 s{S_T0}, s{S_T0}, 4
v_add_u32 v8, s{S_T0}, v8
v_mul_u32_u24 v8, 144, v8
v_bfe_u32 v9, v{V_LANE}, 4, 1
v_lshl_add_u32 v8, v9, 3, v8
s_nop 7
v_cvt_pk_bf16_f32 v16, v{GACC}, v{GACC+1}
v_cvt_pk_bf16_f32 v17, v{GACC+2}, v{GACC+3}
s_barrier
ds_write_b64 v8, v[16:17] offset:64
""")

def out_store(p, extra_wave):
    lsk = Prog.label("os")
    p(f"""
s_waitcnt lgkmcnt(0)
s_barrier
s_mul_i32 s{S_T2}, s{S_TT}, {64*2304}
s_mul_i32 s{S_T1}, s{S_CT}, 144
s_add_u32 s{S_T2}, s{S_T2}, s{S_T1}
""")
    for second in (0, 1):
        if second:
            p(f"s_cmp_lg_u32 s{S_WAVE}, {extra_wave}\ns_cbranch_scc1 {lsk}\ns_mov_b32 s{S_T3}, 8")
        else:
            p(f"s_mov_b32 s{S_T3}, s{S_WAVE}")
        R = 16 + 8 * second
        tile_lane(p, S_T3, R + 4, R + 5, R + 6)
        p(f"""
v_lshlrev_b32 v{R+6}, 4, v{R+6}
ds_read_b128 v[{R}:{R+3}], v{R+6}
v_mul_u32_u24 v{R+4}, 2304, v{R+4}
v_lshl_add_u32 v{R+4}, v{R+5}, 4, v{R+4}
s_waitcnt lgkmcnt(0)
""")
        p.vm(f"buffer_store_dwordx4 v[{R}:{R+3}], v{R+4}, s[{S_OUT}:{S_OUT+3}], s{S_T2} offen", "st")
    p(f"{lsk}:")
    if "nobf" not in EXP:
        lsk = Prog.label("bu")
        bfinal_unit(p, 0, 32)
        p(f"s_cmp_lg_u32 s{S_WAVE}, {extra_wave - 1}\ns_cbranch_scc1 {lsk}")
        bfinal_unit(p, 1, 40)
        p(f"{lsk}:")

EXP = ""
BR = 64
def gen_k3(on=False):
    p = Prog()
    prologue(p, on)
    p(f"s_cmp_ge_u32 s{S_WAVE}, 4\ns_cbranch_scc1 L3_g1")
    if "nowo" not in EXP: wo_loads(p, 4, S_WAVE)
    stamp(p, 1, on)
    lsk = Prog.label("bf3")
    if "nobf" not in EXP:
        p(f"s_mov_b32 s{S_T3}, s{S_WAVE}")
        bfinal_loads(p, S_T3, BR, BR + 4)
        p(f"s_add_u32 s{S_T3}, s{S_WAVE}, 4")
        bfinal_loads(p, S_T3, BR + 8, BR + 12)
        p(f"s_cmp_lg_u32 s{S_WAVE}, 0\ns_cbranch_scc1 {lsk}\ns_mov_b32 s{S_T3}, 8")
        bfinal_loads(p, S_T3, BR + 16, BR + 20)
        p(f"{lsk}:")
    stamp(p, 2, on)
    gemm_main_setup(p)
    p("s_waitcnt vmcnt(0)\ns_barrier")
    stamp(p, 3, on)
    gemm_main(p)
    stamp(p, 4, on)
    out_stage_main(p)
    p("s_branch L3_st")
    p("L3_g1:")
    p.vmq = []
    p(f"s_sub_u32 s42, s{S_WAVE}, 4")
    ostage_setup(p, 42)
    for hl in range(4): kvz_loads(p, hl)
    for hl in range(8):
        if "nopq" not in EXP: phiq_loads(p, hl)
    stamp(p, 1, on)
    ostage(p, on, True)
    stamp(p, 2, on)
    gemm_rem_setup(p)
    p("s_barrier")
    stamp(p, 3, on)
    gemm_rem(p)
    stamp(p, 4, on)
    out_stage_rem(p)
    p("L3_st:")
    p.vmq = []
    out_store(p, 7)
    stamp(p, 5, on)
    p("s_waitcnt vmcnt(0)")
    stamp(p, 6, on)
    stamp_dump(p, on)
    p("s_waitcnt vmcnt(0)\nL3_end:")
    return p.text()

if __name__ == "__main__":
    import k1, k2, sys
    on = "nostamp" not in sys.argv
    for a in sys.argv[1:]:
        if a.startswith("EXP="): EXP = a[4:]
    ks = [dict(name="k1_kernel", body=k1.gen_a1(st_on=on), grid=256, block=768, lds=k1.LDS_END, vgpr=k1.NVGPR),
          dict(name="k2_kernel", body=k2.gen_k2(on), grid=256, block=256, lds=k2.LDS2, vgpr=k2.NV2),
          dict(name="k3_kernel", body=gen_k3(on), grid=256, block=512, lds=LDS3, vgpr=NV3)]
    open(f"k123{EXP}.s" if on else "k123f.s", "w").write(program(ks))
```

```python
from dsl import *

XB = 0
RB = 73728
RING = 336
PK = RB + RING * 144
PKP = 328
VB = PK + 64 * PKP
VP = 200
KGS = PK + 8192
KROW = 272
KG_UNIT = 17 * KROW
LDS_END = max(KGS + 6 * KG_UNIT, VB + 64 * VP, PK + 4 * 9216)
assert LDS_END >= VB + 64 * VP and LDS_END <= 163840

WS_PHIQ = 0
WS_PART = 0x500000
WS_KVZ = 0x700000
WS_UT = 0x800000
WS_KR = 0xB00000
KRP = 4112
WS_YT = 0xE00000
WS_STAMP = 0x7800000
SEG = [1152, 0, 2304]

S_X, S_W, S_PHI, S_WS = 8, 12, 16, 20
S_WAVE, S_TT, S_HG, S_M0W, S_SO, S_J, S_I = 24, 25, 26, 27, 28, 29, 30
S_T0, S_T1, S_T2 = 31, 32, 33
S_MASK63 = 34
S_STAMP = 48
NSTAMP = 27
V_LANE, V_XOFF, V_WOFF, V_T = 1, 2, 3, 4
V_XA, V_XA8 = 5, 9
V_WM, V_WX = 13, 14
V_PKW, V_C = 15, 160
BUF = [dict(B=16, Am=20, Ax=24), dict(B=28, Am=32, Ax=36), dict(B=104, Am=108, Ax=112)]
ACC_M, ACC_X = 40, 56
V_WPHI = 72
V_D2 = 88
V_F = 104
NVGPR = 168
NL = 2

STAMP_ALL = False
def stamp(p, idx, on):
    if on != "L" and not STAMP_ALL and idx not in (0, 30): return
    if idx > 20:
        b = idx - 2
        if b < 23: return
        if EXP == "twice" and b < 26: return
        idx = 21 + (b - 23)
    if on and idx < NSTAMP: p(f"s_memtime s[{S_STAMP + 2 * idx}:{S_STAMP + 2 * idx + 1}]")

def stamp_dump(p, n, on):
    if not on: return
    p("s_waitcnt lgkmcnt(0)")
    p(f"s_lshl_b32 s{S_T0}, s2, 4\ns_add_u32 s{S_T0}, s{S_T0}, s{S_WAVE}\ns_lshl_b32 s{S_T0}, s{S_T0}, 7\ns_add_u32 s{S_T0}, s{S_T0}, {WS_STAMP}")
    p(f"v_mov_b32 v2, 0")
    for i in range(n):
        p(f"v_mov_b32 v3, s{S_STAMP + 2 * i}")
        p.vm(f"buffer_store_dword v3, v2, s[{S_WS}:{S_WS+3}], s{S_T0} offen offset:{4 * i}")

def code_warm(p, first_thread, nper):
    lsk = Prog.label("cw")
    lpc = Prog.label("pc")
    p(f"""
v_subrev_u32 v2, {first_thread}, v0
v_cmp_gt_u32 vcc, {nper}, v2
s_and_saveexec_b64 s[4:5], vcc
s_cbranch_execz {lsk}
s_getpc_b64 s[6:7]
{lpc}:
s_sub_u32 s6, s6, {lpc}-L_code0
s_subb_u32 s7, s7, 0
s_lshr_b32 s3, s2, 3
s_and_b32 s3, s3, 31
s_mul_i32 s3, s3, {nper}
v_add_u32 v2, s3, v2
v_min_u32 v2, (L_end-L_code0)/128, v2
v_lshlrev_b32 v2, 7, v2
v_mov_b32 v3, s7
v_add_co_u32 v2, vcc, s6, v2
s_nop 1
v_addc_co_u32 v3, vcc, 0, v3, vcc
global_load_dword v167, v[2:3], off
{lsk}:
s_mov_b64 exec, s[4:5]
""")

def prologue_common(p):
    p(f"""
L_code0:
s_cmp_ge_u32 s2, 256
s_cbranch_scc1 L_end
""")
    if WARM: code_warm(p, 704, WARM)
    p(f"""
s_load_dwordx4 s[36:39], s[0:1], 0
s_load_dwordx2 s[40:41], s[0:1], 16
s_load_dwordx2 s[42:43], s[0:1], 104
v_and_b32 v{V_LANE}, 63, v0
v_lshrrev_b32 v{V_T}, 6, v0
s_and_b32 s{S_T0}, s2, 7
s_lshl_b32 s{S_T0}, s{S_T0}, 2
v_readfirstlane_b32 s{S_WAVE}, v{V_T}
s_lshr_b32 s{S_T1}, s2, 3
s_and_b32 s{S_T2}, s{S_T1}, 3
s_add_u32 s{S_TT}, s{S_T0}, s{S_T2}
s_lshr_b32 s{S_HG}, s{S_T1}, 2
s_and_b32 s{S_J}, s{S_WAVE}, 1
s_lshr_b32 s{S_I}, s{S_WAVE}, 1
s_and_b32 s{S_I}, s{S_I}, 1
s_mov_b32 s{S_MASK63}, -1
s_mov_b32 s{S_MASK63+1}, 0x7fffffff
""")

def srds(p):
    p(f"""
s_waitcnt lgkmcnt(0)
s_mov_b32 s{S_X}, s36
s_and_b32 s{S_X+1}, s37, 0xffff
s_mov_b32 s{S_X+2}, {2048*1152}
s_mov_b32 s{S_X+3}, 0x20000
s_mov_b32 s{S_W}, s38
s_and_b32 s{S_W+1}, s39, 0xffff
s_mov_b32 s{S_W+2}, {576*3456}
s_mov_b32 s{S_W+3}, 0x20000
s_mov_b32 s{S_PHI}, s40
s_and_b32 s{S_PHI+1}, s41, 0xffff
s_mov_b32 s{S_PHI+2}, {32*648}
s_mov_b32 s{S_PHI+3}, 0x20000
s_mov_b32 s{S_WS}, s42
s_and_b32 s{S_WS+1}, s43, 0xffff
s_mov_b32 s{S_WS+2}, 0x10000000
s_mov_b32 s{S_WS+3}, 0x20000
""")

def gemm_addr_setup(p):
    a, b, c, d, e = 16, 17, 18, 19, 20
    p(f"""
v_and_b32 v{a}, 31, v{V_LANE}
s_lshl_b32 s{S_T0}, s{S_I}, 5
v_add_u32 v{a}, s{S_T0}, v{a}
v_lshrrev_b32 v{b}, 1, v{a}
v_and_b32 v{b}, 7, v{b}
v_lshrrev_b32 v{c}, 5, v{V_LANE}
v_xor_b32 v{b}, v{b}, v{c}
v_lshlrev_b32 v{b}, 4, v{b}
v_lshlrev_b32 v{a}, 7, v{a}
v_add_u32 v{a}, v{a}, v{b}
""")
    for k in range(4):
        p(f"v_xor_b32 v{V_XA+k}, {32*k}, v{a}")
        p(f"v_add_u32 v{V_XA8+k}, 0x10000, v{V_XA+k}")
    p(f"""
v_lshrrev_b32 v{a}, 5, v{V_LANE}
v_bfe_u32 v{b}, v{V_LANE}, 2, 2
v_lshl_add_u32 v{a}, v{a}, 3, v{b}
v_mul_u32_u24 v{a}, 144, v{a}
v_add_u32 v{a}, {RB}, v{a}
v_and_b32 v{b}, 1, v{b}
v_and_b32 v{c}, 1, v{V_LANE}
v_lshl_add_u32 v{a}, v{c}, 3, v{a}
v_lshl_add_u32 v{V_WX}, v{b}, 7, v{a}
v_bfe_u32 v{c}, v{V_LANE}, 4, 1
v_bfe_u32 v{d}, v{V_LANE}, 1, 1
v_lshl_add_u32 v{c}, v{c}, 1, v{d}
s_mul_i32 s{S_T0}, s{S_J}, 5
v_add_u32 v{c}, s{S_T0}, v{c}
v_lshlrev_b32 v{c}, 2, v{c}
v_sub_u32 v{c}, v{c}, v{b}
v_add_u32 v{c}, 2, v{c}
v_mul_u32_u24 v{d}, 57, v{c}
v_lshrrev_b32 v{d}, 9, v{d}
v_mul_u32_u24 v{d}, 9, v{d}
v_sub_u32 v{c}, v{c}, v{d}
v_lshl_add_u32 v{V_WM}, v{c}, 4, v{a}
""")

def n_super():
    return -(-1728 // (7 * NL))
def w_needed(chunk):
    return min(n_super() - 1, (64 * (chunk + 1) - 1) // (7 * NL))
def w_free_after(g):
    top = 7 * NL * g + 7 * NL - 1 - RING
    if top < 0: return -2
    return max(0, -(-(top + 1 - 48) // 64))

V_LW, V_LX, V_LR, V_LT = 2, 3, 6, 8
S_LM0W, S_LM0X, S_L = 44, 45, 46
def loader_setup(p):
    a, b, c = 16, 17, 18
    p(f"""
s_sub_u32 s{S_L}, s{S_WAVE}, 8
s_mul_i32 s{S_LM0W}, s{S_L}, 1008
s_lshl_b32 s{S_LM0X}, s{S_L}, 10
s_mul_i32 s{S_T0}, s{S_L}, 7
v_mul_u32_u24 v{V_LR}, 57, v{V_LANE}
v_lshrrev_b32 v{V_LR}, 9, v{V_LR}
v_mul_u32_u24 v{b}, 9, v{V_LR}
v_sub_u32 v{b}, v{V_LANE}, v{b}
v_add_u32 v{V_LR}, s{S_T0}, v{V_LR}
s_mul_i32 s{S_T2}, s{S_HG}, 144
v_mul_u32_u24 v{a}, 3456, v{V_LR}
v_add_u32 v{a}, s{S_T2}, v{a}
v_and_b32 v{c}, 1, v{V_LR}
v_add3_u32 v{c}, v{b}, v{c}, 7
v_mul_u32_u24 v{c}, 7, v{c}
v_mul_u32_u24 v19, 57, v{c}
v_lshrrev_b32 v19, 9, v19
v_mul_u32_u24 v19, 9, v19
v_sub_u32 v{c}, v{c}, v19
v_lshl_add_u32 v{V_LW}, v{c}, 4, v{a}
s_lshl_b32 s{S_T0}, s{S_L}, 3
v_lshrrev_b32 v{a}, 3, v{V_LANE}
v_add_u32 v{a}, s{S_T0}, v{a}
v_bfe_u32 v{b}, v{a}, 1, 3
v_and_b32 v{c}, 7, v{V_LANE}
v_mul_u32_u24 v{a}, 1152, v{a}
v_xor_b32 v19, v{b}, v{c}
v_lshl_add_u32 v{V_LX}, v19, 4, v{a}
s_mul_i32 s{S_T1}, s{S_TT}, {64*1152}
""")

def dma_w(p, g):
    v0 = 7 * NL * g
    ps = v0 // 576
    k0 = v0 - 576 * ps
    ring = (v0 % RING) * 144
    cross = k0 + 7 * NL > 576 and ps < 2
    voff = V_LW
    if not cross:
        p(f"s_add_u32 m0, s{S_LM0W}, {RB + ring}\ns_mov_b32 s{S_SO}, {k0 * 3456 + SEG[ps]}")
    else:
        x = 576 - k0
        d0 = k0 * 3456 + SEG[ps]
        d1 = SEG[ps + 1] - x * 3456
        p(f"""
v_cmp_le_u32 vcc, {x}, v{V_LR}
v_add_u32 v{V_LT}, {d0}, v{voff}
v_subrev_u32 v{V_LT+1}, {-d1}, v{voff}
s_add_u32 m0, s{S_LM0W}, {RB + ring}
v_cndmask_b32 v{V_LT}, v{V_LT}, v{V_LT+1}, vcc
s_mov_b32 s{S_SO}, 0
""")
        assert d1 < 0
        voff = V_LT
    p.vm(f"buffer_load_dwordx4 v{voff}, s[{S_W}:{S_W+3}], s{S_SO} offen lds", ("w", g))

def dma_x(p, cb, n):
    p(f"s_add_u32 m0, s{S_LM0X}, {XB + cb * 8192 + n * NL * 1024}\ns_add_u32 s{S_SO}, s{S_T1}, {n * NL * 8 * 1152 + cb * 128}")
    p.vm(f"buffer_load_dwordx4 v{V_LX}, s[{S_X}:{S_X+3}], s{S_SO} offen lds", ("x", cb))

def gen_loader(st_on):
    if st_on: st_on = "L"
    assert NL % 2 == 0
    p = Prog()
    loader_setup(p)
    items = []
    nw = 0
    for c in range(27):
        if c < 9: items += [("x", c, n) for n in range(8 // NL)]
        while nw <= w_needed(c):
            items.append(("w", nw, c)); nw += 1
    pos = 0
    cur63 = None
    def issue(maxchunk, bar):
        nonlocal pos, cur63
        while pos < len(items):
            it = items[pos]
            ch = it[1] if it[0] == "x" else it[2]
            if ch > maxchunk: break
            if it[0] == "w" and w_free_after(it[1]) > bar: break
            want63 = it[0] == "w"
            if cur63 != want63:
                p(f"s_mov_b64 exec, s[{S_MASK63}:{S_MASK63+1}]" if want63 else "s_mov_b64 exec, -1")
                cur63 = want63
            if it[0] == "x": dma_x(p, it[1], it[2])
            else: dma_w(p, it[1])
            pos += 1
    def landed(chunk):
        assert all((it[1] if it[0] == "x" else it[2]) > chunk for it in items[pos:]), chunk
        tags = [("w", i) for i in range(w_needed(chunk) + 1)]
        if chunk < 9: tags.append(("x", chunk))
        p.vmwait(tags)
    issue(1, -2)
    landed(0)
    p("s_barrier")
    stamp(p, 1, st_on)
    issue(3, -2)
    for b in range(26):
        landed(b + 1)
        p("s_barrier")
        stamp(p, b + 2, st_on)
        issue(b + 6, b)
    assert pos == len(items), (pos, len(items))
    p("s_barrier")
    stamp(p, 28, st_on)
    p("s_barrier")
    stamp(p, 29, st_on)
    stamp(p, 30, st_on)
    stamp_dump(p, NSTAMP, st_on)
    p("s_waitcnt vmcnt(0)\ns_branch L_end")
    return p.text()

def reads(p, ps, S, part):
    b = BUF[S % 3]
    cb, ks = S // 4, S % 4
    o = ((576 * ps + 16 * S) % RING) * 144
    if part == 0:
        if cb < 8: p(f"ds_read_b128 v[{b['B']}:{b['B']+3}], v{V_XA+ks} offset:{XB + cb*8192}")
        else: p(f"ds_read_b128 v[{b['B']}:{b['B']+3}], v{V_XA8+ks} offset:{XB}")
        p(f"ds_read_b64_tr_b16 v[{b['Am']}:{b['Am']+1}], v{V_WM} offset:{o}")
        p(f"ds_read_b64_tr_b16 v[{b['Am']+2}:{b['Am']+3}], v{V_WM} offset:{o + 576}")
    else:
        p(f"ds_read_b64_tr_b16 v[{b['Ax']}:{b['Ax']+1}], v{V_WX} offset:{o}")
        p(f"ds_read_b64_tr_b16 v[{b['Ax']+2}:{b['Ax']+3}], v{V_WX} offset:{o + 576}")

def mfma(p, S, which):
    b = BUF[S % 3]
    acc, a = (ACC_M, b["Am"]) if which == 0 else (ACC_X, b["Ax"])
    c = "0" if S == 0 else f"v[{acc}:{acc+15}]"
    p(f"v_mfma_f32_32x32x16_bf16 v[{acc}:{acc+15}], v[{a}:{a+3}], v[{b['B']}:{b['B']+3}], {c}")

def gemm_pass(p, ps, st_on, last_barrier=True):
    for S in (0, 1):
        reads(p, ps, S, 0); reads(p, ps, S, 1)
    for S in range(36):
        p(f"s_waitcnt lgkmcnt({5 if S < 35 else 0})")
        if S % 4 == 2:
            p("s_barrier")
            stamp(p, 9 * ps + S // 4 + 2, st_on)
        mfma(p, S, 0)
        if S + 2 < 36: reads(p, ps, S + 2, 0)
        mfma(p, S, 1)
        if S + 2 < 36: reads(p, ps, S + 2, 1)

def wphi_gather(p):
    base, hreg, m, msk, tmp = 16, 17, 18, 19, 20
    p(f"""
v_and_b32 v{m}, 31, v{V_LANE}
v_lshrrev_b32 v{hreg}, 5, v{V_LANE}
v_cmp_eq_u32 vcc, 20, v{m}
v_mov_b32 v{tmp}, 17
s_nop 0
v_cndmask_b32 v{base}, v{m}, v{tmp}, vcc
v_cmp_gt_u32 s[44:45], 17, v{m}
s_or_b64 s[44:45], s[44:45], vcc
v_min_u32 v{base}, 17, v{base}
v_lshlrev_b32 v{base}, 1, v{base}
v_cndmask_b32 v{msk}, 0, -1, s[44:45]
v_mul_u32_u24 v{tmp}, 144, v{hreg}
s_and_b32 s{S_T0}, s{S_WAVE}, 3
s_lshl_b32 s{S_T0}, s{S_T0}, 11
s_add_u32 s{S_T0}, s{S_T0}, {PK}
v_add3_u32 v{base}, v{base}, v{tmp}, s{S_T0}
v_cmp_eq_u32 s[46:47], 1, v{hreg}
""")
    tabs = {0: [(0, 0, 16), (0, 16, 16), (1, -2, 16), (1, 14, 8)],
            1: [(0, -4, 8), (0, 4, 16), (1, -14, 16), (1, 2, 16)]}
    lj1, lend = Prog.label("wg_j1"), Prog.label("wg_end")
    p(f"s_cmp_eq_u32 s{S_J}, 1\ns_cbranch_scc1 {lj1}")
    for j in (0, 1):
        if j == 1: p(f"{lj1}:")
        masks = []
        for f, (hd, off, lim) in enumerate(tabs[j]):
            for jj in range(8):
                rho = [(jj & 3) + 8 * (jj >> 2) + 4 * h for h in (0, 1)]
                dd = [r + off for r in rho]
                ok = [0 <= dd[h] < 18 and rho[h] < lim for h in (0, 1)]
                reg = V_WPHI + 4 * f + jj // 2
                addr = hd * 648 + dd[0] * 36
                op = "ds_read_u16_d16_hi" if jj & 1 else "ds_read_u16"
                dst = reg if jj & 1 else reg + V_D2 - V_WPHI
                if ok[0] or ok[1]:
                    if addr >= 0:
                        p(f"{op} v{dst}, v{base} offset:{addr}")
                    else:
                        p(f"v_subrev_u32 v{tmp}, {-addr}, v{base}\nv_max_i32 v{tmp}, 0, v{tmp}\n{op} v{dst}, v{tmp}")
                else:
                    p(f"v_mov_b32 v{dst}, 0")
                if jj & 1 == 0: masks.append([reg, [0, 0]])
                for h in (0, 1):
                    if ok[h]: masks[-1][1][h] |= 0xFFFF0000 if jj & 1 else 0xFFFF
        p("s_waitcnt lgkmcnt(0)")
        for reg, mk in masks:
            if mk != [0, 0]: p(f"v_or_b32 v{reg}, v{reg}, v{reg + V_D2 - V_WPHI}")
            if mk == [0, 0]:
                p(f"v_mov_b32 v{reg}, 0")
            elif mk[0] == mk[1] == 0xFFFFFFFF:
                p(f"v_and_b32 v{reg}, v{reg}, v{msk}")
            else:
                p(f"v_mov_b32 v{tmp}, {mk[0]}\nv_mov_b32 v21, {mk[1]}\nv_cndmask_b32 v{tmp}, v{tmp}, v21, s[46:47]\nv_and_b32 v{tmp}, v{tmp}, v{msk}\nv_and_b32 v{reg}, v{reg}, v{tmp}")
        if j == 0: p(f"s_branch {lend}")
    p(f"{lend}:")

def second_stage(s):
    F = [V_F, V_F + 4, V_F + 8]
    l1, le = Prog.label("ss_j1"), Prog.label("ss_end")
    t = f"s_nop 7\ns_nop 3\ns_cmp_eq_u32 s{S_J}, 1\ns_cbranch_scc1 {l1}\n"
    for j in (0, 1):
        ta, tb, mx = (F[0], F[1], F[2]) if j == 0 else (F[1], F[2], F[0])
        if j == 1: t += f"{l1}:\n"
        for r in range(4): t += f"v_cvt_pk_bf16_f32 v{ta+r}, v{ACC_M+2*r}, v{ACC_M+2*r+1}\n"
        for r in range(4): t += f"v_cvt_pk_bf16_f32 v{tb+r}, v{ACC_M+8+2*r}, v{ACC_M+8+2*r+1}\n"
        for r in range(4): t += f"v_cvt_pk_bf16_f32 v{mx+r}, v{ACC_X+2*r}, v{ACC_X+2*r+1}\n"
        if j == 0: t += f"s_branch {le}\n"
    t += f"{le}:\ns_nop 1\n"
    s.atomic(t); t = ""
    DA, DB = V_D2, ACC_M
    t += f"v_mfma_f32_32x32x16_bf16 v[{DA}:{DA+15}], v[{V_WPHI}:{V_WPHI+3}], v[{F[0]}:{F[0]+3}], 0\n"
    t += f"v_mfma_f32_32x32x16_bf16 v[{DB}:{DB+15}], v[{V_WPHI+8}:{V_WPHI+11}], v[{F[1]}:{F[1]+3}], 0\n"
    t += f"v_mfma_f32_32x32x16_bf16 v[{DA}:{DA+15}], v[{V_WPHI+4}:{V_WPHI+7}], v[{F[0]+4}:{F[0]+7}], v[{DA}:{DA+15}]\n"
    t += f"v_mfma_f32_32x32x16_bf16 v[{DB}:{DB+15}], v[{V_WPHI+12}:{V_WPHI+15}], v[{F[2]}:{F[2]+3}], v[{DB}:{DB+15}]\n"
    t += "s_nop 7\ns_nop 3\n"
    s(t)
    s.brk()
    return DA, DB

EP, EM = 118, 128
OPK = 138
TM = 148
def softmax(s, D):
    mx, mn, t1, t2, A, S, T = TM, TM + 1, TM + 2, TM + 3, TM + 4, TM + 6, TM + 8
    C = V_C
    t = f"v_max3_f32 v{mx}, v{D}, v{D+1}, v{D+2}\nv_min3_f32 v{mn}, v{D}, v{D+1}, v{D+2}\n"
    for k in (3, 5, 7):
        t += f"v_max3_f32 v{mx}, v{mx}, v{D+k}, v{D+k+1}\nv_min3_f32 v{mn}, v{mn}, v{D+k}, v{D+k+1}\n"
    t += f"v_mov_b32 v{t1}, v{mx}\nv_mov_b32 v{t2}, v{mn}\ns_nop 1\n"
    t += f"v_permlane32_swap_b32 v{mx}, v{t1}\nv_permlane32_swap_b32 v{mn}, v{t2}\ns_nop 0\n"
    t += f"v_max_f32 v{mx}, v{mx}, v{t1}\nv_min_f32 v{mn}, v{mn}, v{t2}\n"
    t += f"v_mul_f32 v{A}, v{C}, v{mx}\nv_mul_f32 v{A+1}, v{C}, v{mn}\n"
    s(t); s.brk()
    for grp in ((0, 1, 2), (3, 4, 5), (6, 7, 8)):
        t = ""
        for k in grp:
            t += f"v_fma_f32 v{EP+k}, v{D+k}, v{C}, -v{A}\nv_fma_f32 v{EM+k}, -v{D+k}, v{C}, v{A+1}\n"
        for k in grp:
            t += f"v_exp_f32 v{EP+k}, v{EP+k}\nv_exp_f32 v{EM+k}, v{EM+k}\n"
        s(t); s.brk()
    t = "s_nop 0\n"
    t += f"v_add_f32 v{S}, v{EP}, v{EP+1}\nv_add_f32 v{S+1}, v{EM}, v{EM+1}\n"
    t += f"v_add_f32 v{T}, v{EP+2}, v{EP+3}\nv_add_f32 v{T+1}, v{EM+2}, v{EM+3}\n"
    for k in (4, 6):
        t += f"v_add_f32 v{S}, v{S}, v{EP+k}\nv_add_f32 v{S+1}, v{S+1}, v{EM+k}\n"
        t += f"v_add_f32 v{T}, v{T}, v{EP+k+1}\nv_add_f32 v{T+1}, v{T+1}, v{EM+k+1}\n"
    t += f"v_add_f32 v{S}, v{S}, v{EP+8}\nv_add_f32 v{S+1}, v{S+1}, v{EM+8}\n"
    t += f"v_add_f32 v{S}, v{S}, v{T}\nv_add_f32 v{S+1}, v{S+1}, v{T+1}\n"
    t += f"v_mov_b32 v{t1}, v{S}\nv_mov_b32 v{t2}, v{S+1}\ns_nop 1\n"
    t += f"v_permlane32_swap_b32 v{S}, v{t1}\nv_permlane32_swap_b32 v{S+1}, v{t2}\ns_nop 0\n"
    t += f"v_add_f32 v{S}, v{S}, v{t1}\nv_add_f32 v{S+1}, v{S+1}, v{t2}\n"
    t += f"v_rcp_f32 v{S}, v{S}\nv_rcp_f32 v{S+1}, v{S+1}\ns_nop 0\n"
    s(t); s.brk()
    t = ""
    for k in range(0, 8, 2):
        for E, R in ((EP, S), (EM, S + 1)):
            t += f"v_mul_f32 v{E+k}, v{E+k}, v{R}\nv_mul_f32 v{E+k+1}, v{E+k+1}, v{R}\n"
        t += f"v_cvt_pk_bf16_f32 v{OPK+k//2}, v{EP+k}, v{EP+k+1}\n"
        t += f"v_cvt_pk_bf16_f32 v{OPK+4+k//2}, v{EM+k}, v{EM+k+1}\n"
        if k == 2:
            s(t); s.brk(); t = ""
    t += f"v_mul_f32 v{EP+8}, v{EP+8}, v{S}\nv_mul_f32 v{EM+8}, v{EM+8}, v{S+1}\n"
    t += f"v_cvt_pk_bf16_f32 v{OPK+8}, v{EP+8}, v{EM+8}\n"
    s(t); s.brk()

def phik_write(s, hb):
    o = 80 * hb
    s(f"""
ds_write_b64 v{V_PKW}, v[{OPK}:{OPK+1}] offset:{o}
ds_write_b64 v{V_PKW}, v[{OPK+2}:{OPK+3}] offset:{o+16}
ds_write_b64 v{V_PKW}, v[{OPK+4}:{OPK+5}] offset:{o+32}
ds_write_b64 v{V_PKW}, v[{OPK+6}:{OPK+7}] offset:{o+48}
ds_write_b64 v{V_PKW}, v[{OPK+8}:{OPK+9}] offset:{o+64}
""")
    s.brk()

V_QOFF = 158
def phiq_store(s, hb):
    s(f"s_add_u32 s{S_T2}, s{S_T1}, {hb * 2 * 2304}")
    s.vm(f"buffer_store_dwordx4 v[{OPK}:{OPK+3}], v{V_QOFF}, s[{S_WS}:{S_WS+3}], s{S_T2} offen", "st")
    s.vm(f"buffer_store_dwordx4 v[{OPK+4}:{OPK+7}], v{V_QOFF}, s[{S_WS}:{S_WS+3}], s{S_T2} offen offset:1024", "st")
    s.vm(f"buffer_store_dword v{OPK+8}, v{V_QOFF+1}, s[{S_WS}:{S_WS+3}], s{S_T2} offen offset:2048", "st")
    s("s_nop 1")
    s.brk()

def soft_setup(p, is_k):
    p(f"v_mov_b32 v{V_C}, 0x3fb8aa3b\nv_mov_b32 v{OPK+9}, 0")
    if is_k:
        p(f"""
v_and_b32 v16, 31, v{V_LANE}
s_lshl_b32 s{S_T0}, s{S_I}, 5
v_add_u32 v16, s{S_T0}, v16
v_mul_u32_u24 v16, {PKP}, v16
v_lshrrev_b32 v17, 5, v{V_LANE}
v_lshl_add_u32 v16, v17, 3, v16
s_mul_i32 s{S_T0}, s{S_J}, 160
s_add_u32 s{S_T0}, s{S_T0}, {PK}
v_add_u32 v{V_PKW}, s{S_T0}, v16
""")
    else:
        p(f"v_lshlrev_b32 v{V_QOFF}, 4, v{V_LANE}\nv_lshlrev_b32 v{V_QOFF+1}, 2, v{V_LANE}")

V_VW0, V_VW1 = 72, 73
V_KA, V_KA1, V_KB = 74, 75, 76
def v_setup(p):
    p(f"""
v_and_b32 v16, 31, v{V_LANE}
s_lshl_b32 s{S_T0}, s{S_I}, 5
v_add_u32 v16, s{S_T0}, v16
v_mul_u32_u24 v16, {VP}, v16
v_lshrrev_b32 v17, 5, v{V_LANE}
v_add_u32 v16, {VB}, v16
v_lshl_add_u32 v{V_VW0}, v17, 3, v16
v_mul_u32_u24 v18, 20, v17
v_add_u32 v{V_VW1}, v16, v18
s_and_b32 s{S_T0}, s{S_WAVE}, 3
s_mul_i32 s{S_T1}, s{S_T0}, 48
v_mul_u32_u24 v16, {VP}, v{V_LANE}
s_add_u32 s{S_T1}, s{S_T1}, {VB}
v_add_u32 v16, s{S_T1}, v16
v_mov_b32 v18, 0x3f80
v_mov_b32 v19, 0
ds_write_b32 v16, v18 offset:36
ds_write_b64 v16, v[18:19] offset:40
v_lshrrev_b32 v16, 5, v{V_LANE}
v_bfe_u32 v17, v{V_LANE}, 2, 2
v_lshl_add_u32 v16, v16, 3, v17
v_bfe_u32 v17, v{V_LANE}, 4, 1
v_and_b32 v18, 3, v{V_LANE}
v_lshl_add_u32 v17, v17, 2, v18
v_mul_u32_u24 v19, {PKP}, v16
s_mul_i32 s{S_T1}, s{S_T0}, 80
s_add_u32 s{S_T1}, s{S_T1}, {PK}
v_add_u32 v19, s{S_T1}, v19
v_lshl_add_u32 v{V_KA}, v17, 3, v19
v_and_b32 v18, 1, v{V_LANE}
v_lshl_add_u32 v{V_KA1}, v18, 3, v19
v_add_u32 v{V_KA1}, 64, v{V_KA1}
v_min_u32 v17, 5, v17
v_mul_u32_u24 v19, {VP}, v16
s_mul_i32 s{S_T1}, s{S_T0}, 48
s_add_u32 s{S_T1}, s{S_T1}, {VB}
v_add_u32 v19, s{S_T1}, v19
v_lshl_add_u32 v{V_KB}, v17, 3, v19
""")

def v_write(s):
    l1, le = Prog.label("vw_j1"), Prog.label("vw_end")
    Q = V_D2
    t = "s_nop 7\ns_nop 3\n"
    for r in range(8): t += f"v_cvt_pk_bf16_f32 v{Q+r}, v{ACC_M+2*r}, v{ACC_M+2*r+1}\n"
    for r in range(2): t += f"v_cvt_pk_bf16_f32 v{Q+8+r}, v{ACC_X+2*r}, v{ACC_X+2*r+1}\n"
    def off(col): return 48 * (col // 18) + 2 * (col % 18)
    def wr(reg, col0):
        o0, o1 = off(col0), off(col0 + 4)
        assert o1 - o0 in (8, 20)
        return f"ds_write_b32 v{V_VW0 if o1 - o0 == 8 else V_VW1}, v{reg} offset:{o0}\n"
    t += f"s_cmp_eq_u32 s{S_J}, 1\ns_cbranch_scc1 {l1}\n"
    for j in (0, 1):
        if j == 1: t += f"{l1}:\n"
        for r in range(8):
            t += wr(Q + r, 40 * j + 8 * (r // 2) + 2 * (r % 2))
        if j == 0: t += f"s_branch {le}\n"
    t += f"{le}:\n"
    for r in range(2): t += wr(Q + 8 + r, 32 + 2 * r)
    t += "s_waitcnt lgkmcnt(0)\n"
    s.atomic(t); s.brk()

def kv_partial(s):
    A0, A1, Bf = 88, 104, 120
    D0, D1 = ACC_M, ACC_X
    t = ""
    for k in range(4):
        for q in range(2):
            ro = (16 * k + 4 * q)
            t += f"ds_read_b64_tr_b16 v[{A0+4*k+2*q}:{A0+4*k+2*q+1}], v{V_KA} offset:{ro*PKP}\n"
            t += f"ds_read_b64_tr_b16 v[{Bf+4*k+2*q}:{Bf+4*k+2*q+1}], v{V_KB} offset:{ro*VP}\n"
            t += f"ds_read_b64_tr_b16 v[{A1+4*k+2*q}:{A1+4*k+2*q+1}], v{V_KA1} offset:{ro*PKP}\n"
        if k == 1:
            s(t); s.brk(); t = ""
    t += "s_waitcnt lgkmcnt(0)\n"
    s(t); s.brk()
    t = ""
    for k in range(4):
        c0 = "0" if k == 0 else f"v[{D0}:{D0+15}]"
        c1 = "0" if k == 0 else f"v[{D1}:{D1+15}]"
        t += f"v_mfma_f32_32x32x16_bf16 v[{D0}:{D0+15}], v[{A0+4*k}:{A0+4*k+3}], v[{Bf+4*k}:{Bf+4*k+3}], {c0}\n"
        t += f"v_mfma_f32_32x32x16_bf16 v[{D1}:{D1+15}], v[{A1+4*k}:{A1+4*k+3}], v[{Bf+4*k}:{Bf+4*k+3}], {c1}\n"
    t += "s_nop 7\ns_nop 3\n"
    s(t); s.brk()
    P = 88
    t = ""
    for r in range(8): t += f"v_cvt_pk_bf16_f32 v{P+r}, v{D0+2*r}, v{D0+2*r+1}\n"
    t += f"v_cvt_pk_bf16_f32 v{P+8}, v{D1}, v{D1+1}\n"
    t += f"""
v_and_b32 v104, 31, v{V_LANE}
v_lshrrev_b32 v105, 5, v{V_LANE}
v_cmp_gt_u32 vcc, 19, v104
v_cmp_eq_u32 s[44:45], 20, v104
s_or_b64 s[44:45], s[44:45], vcc
v_min_u32 v104, 19, v104
v_mul_u32_u24 v105, 20, v105
v_add_u32 v104, v104, v105
v_lshlrev_b32 v105, 2, v104
v_lshlrev_b32 v104, 4, v104
s_lshl_b32 s{S_T1}, s{S_HG}, 5
s_add_u32 s{S_T1}, s{S_T1}, s{S_TT}
s_lshl_b32 s{S_T1}, s{S_T1}, 2
s_and_b32 s{S_T0}, s{S_WAVE}, 3
s_add_u32 s{S_T1}, s{S_T1}, s{S_T0}
s_mul_i32 s{S_T1}, s{S_T1}, 1440
s_add_u32 s{S_T1}, s{S_T1}, {WS_PART}
s_mov_b64 exec, s[44:45]
"""
    s(t)
    s.vm(f"buffer_store_dwordx4 v[{P}:{P+3}], v104, s[{S_WS}:{S_WS+3}], s{S_T1} offen", "st")
    s.vm(f"buffer_store_dwordx4 v[{P+4}:{P+7}], v104, s[{S_WS}:{S_WS+3}], s{S_T1} offen offset:640", "st")
    s.vm(f"buffer_store_dword v{P+8}, v105, s[{S_WS}:{S_WS+3}], s{S_T1} offen offset:1280", "st")
    s("s_mov_b64 exec, -1")
    s.brk()

def side_iters(p, its, slices, st_on=False):
    for n, it in enumerate(its):
        emit_items(p, slices[n])
        p("s_barrier")
        stamp(p, it + 2, st_on)

WS_DBG = 0x1000000
def dump_regs(s, regs, slot):
    s(f"s_nop 7\ns_nop 7\ns_lshl_b32 s{S_T0}, s2, 3\ns_add_u32 s{S_T0}, s{S_T0}, s{S_WAVE}\ns_lshl_b32 s{S_T0}, s{S_T0}, 2\ns_add_u32 s{S_T0}, s{S_T0}, {slot}\ns_lshl_b32 s{S_T0}, s{S_T0}, 14\ns_add_u32 s{S_T0}, s{S_T0}, {WS_DBG}\nv_lshlrev_b32 v165, 2, v{V_LANE}")
    for n, r in enumerate(regs):
        s(f"s_add_u32 s{S_T2}, s{S_T0}, {n * 256}")
        s.vm(f"buffer_store_dword v{r}, v165, s[{S_WS}:{S_WS+3}], s{S_T2} offen", "dbg")
    s("s_nop 1")

KG = dict(RAW=16, LDT=20, NDL=21, D2P=22, DT2=23, AR=24, BI=25, C=26, E1=28, E2=30, E4=32, E8=34, E16=36, E256=38,
          G=40,
          ZX=(54, 56), ZY=(58, 60), TX=62, TY=64, CV=66, VA=68,
          ACC=88, BF=120, AF=136, P=152,
          KO=2, DSK=3)
S_GP = 8
S_CH, S_UNIT = 36, 37

def kg_setup(p):
    k = KG
    p(f"""
s_lshr_b32 s38, s{S_UNIT}, 1
s_lshr_b32 s39, s2, 3
s_mul_i32 s39, s39, 3
s_add_u32 s38, s38, s39
s_and_b32 s39, s2, 7
s_mul_i32 s{S_CH}, s39, 72
s_add_u32 s{S_CH}, s{S_CH}, s38
s_and_b32 s39, s{S_UNIT}, 1
s_lshl_b32 s38, s{S_CH}, 8
s_lshl_b32 s39, s39, 7
s_add_u32 s38, s38, s39
v_lshlrev_b32 v{k['TX']}, 1, v{V_LANE}
v_add_u32 v{k['TX']}, s38, v{k['TX']}
s_lshl_b32 s38, s{S_CH}, 1
v_mov_b32 v{k['TY']}, s38
""")
    for q in range(4):
        p.vm(f"global_load_ushort v{k['RAW']+q}, v{k['TX']}, s[{S_GP+2+2*q}:{S_GP+3+2*q}]", "kgp")
    p.vm(f"global_load_ushort v{k['DSK']}, v{k['TY']}, s[42:43]", "kgp")
    p.vm(f"global_load_ushort v{k['LDT']}, v{k['TY']}, s[{S_GP+10}:{S_GP+11}]", "kgp")
    r, kq, t, u = k["ZX"][0], k["ZX"][1], k["ZY"][0], k["ZY"][1]
    p(f"""
s_mul_i32 s38, s{S_UNIT}, {KG_UNIT}
s_add_u32 s38, s38, {KGS}
s_mov_b32 m0, s38
v_and_b32 v{r}, 15, v{V_LANE}
v_lshrrev_b32 v{kq}, 4, v{V_LANE}
v_lshl_add_u32 v{u}, v{kq}, 4, s38
v_mul_u32_u24 v{t}, {KROW}, v{r}
v_add_u32 v{k['VA']}, v{t}, v{u}
""")
    for n, sh in ((1, 1), (2, 2), (3, 3)):
        p(f"""
v_bfe_u32 v{t}, v{r}, {sh}, 1
v_add3_u32 v{t}, v{t}, v{r}, {(1 << (sh - 1)) - 1}
v_lshrrev_b32 v{t}, {sh}, v{t}
v_mul_u32_u24 v{t}, {KROW}, v{t}
v_add_u32 v{k['VA']+n}, v{t}, v{u}
""")
    p(f"""
v_lshlrev_b32 v{t}, 5, v{r}
v_lshl_add_u32 v{t}, v{kq}, 3, v{t}
v_sub_u32 v{k['KO']}, {4088 - 3584}, v{t}
""")

def kgen(side):
    import struct
    k = KG
    L2E = "0x3fb8aa3b"
    VA, P, G = k["VA"], k["P"], k["G"]
    def cmul(s, T, d, a, w):
        s(f"v_mul_f32 v{T}, v{a+1}, v{w+1}\nv_mul_f32 v{T+1}, v{a+1}, v{w}\nv_fma_f32 v{d}, v{a}, v{w}, -v{T}\nv_fma_f32 v{d+1}, v{a}, v{w+1}, v{T+1}")
    def sq(s, T, d, a):
        s(f"v_mul_f32 v{T}, v{a+1}, v{a+1}\nv_mul_f32 v{T+1}, v{a}, v{a+1}\nv_fma_f32 v{d}, v{a}, v{a}, -v{T}\nv_add_f32 v{d+1}, v{T+1}, v{T+1}")
    def direct(s, T, d, t, conj=False):
        lit = "0x%08x" % struct.unpack("<I", struct.pack("<f", float(t)))[0]
        if t == 1:
            s(f"v_exp_f32 v{d}, v{k['AR']}\nv_fract_f32 v{T}, v{k['BI']}")
        else:
            s(f"v_mul_f32 v{d}, {lit}, v{k['AR']}\nv_mul_f32 v{T}, {lit}, v{k['BI']}\nv_exp_f32 v{d}, v{d}\nv_fract_f32 v{T}, v{T}")
        neg = "-" if conj else ""
        s(f"v_cos_f32 v{T+1}, v{T}\nv_sin_f32 v{T}, v{T}\ns_nop 0\nv_mul_f32_e64 v{d+1}, {neg}v{d}, v{T}\nv_mul_f32 v{d}, v{d}, v{T+1}")
    def chain(s, T, Z, start, w, n, sink):
        cur = start
        for j in range(1, n):
            d = Z[j % 2]
            cmul(s, T, d, cur, w)
            sink(s, j - 1, cur)
            cur = d
        sink(s, n - 1, cur)
    def to_lds(r0, cv):
        def f(s, j, z):
            s(f"v_cvt_pk_bf16_f32 v{cv}, v{z}, v{z+1}")
            s.ds(f"ds_write_addtid_b32 v{cv} offset:{(r0 + j) * KROW}")
        return f
    def to_reg(p0):
        return lambda s, j, z: s(f"v_cvt_pk_bf16_f32 v{p0 + j}, v{z}, v{z+1}")
    def put(s, p0, n, r0):
        for j in range(n): s.ds(f"ds_write_addtid_b32 v{p0 + j} offset:{(r0 + j) * KROW}")
    def reads(s, dst, va, r0, tag):
        for ks in range(4): s.ds(f"ds_read_b128 v[{dst+4*ks}:{dst+4*ks+3}], v{va} offset:{r0 * KROW + 64 * ks}", tag)
    def mfmas(s, blk, af):
        s.dswait(("a", blk))
        acc = k["ACC"] + 4 * blk
        for ks in range(4):
            c = "0" if ks == 0 else f"v[{acc}:{acc+3}]"
            s(f"v_mfma_f32_16x16x32_bf16 v[{acc}:{acc+3}], v[{af+4*ks}:{af+4*ks+3}], v[{k['BF']+4*ks}:{k['BF']+4*ks+3}], {c}")
    TX, TY, ZX, ZY, CV = k["TX"], k["TY"], k["ZX"], k["ZY"], k["CV"]
    AF, AF2 = k["AF"], k["AF2"]
    m = Str()
    m.vmwait("kgp")
    R = k["RAW"]
    x, y = Str(), Str()
    x(f"""
v_lshlrev_b32 v{TX}, 16, v{k['LDT']}
v_mul_f32 v{TX}, {L2E}, v{TX}
v_exp_f32 v{TX}, v{TX}
v_mov_b32 v{CV}, 0x3f80
v_cvt_pk_bf16_f32 v{TX}, v{TX}, v{TX}
v_and_b32 v{TX}, 0xffff0000, v{TX}
v_mul_f32 v{k['NDL']}, 0xbfb8aa3b, v{TX}
v_mul_f32 v{k['D2P']}, 0x3e22f983, v{TX}
v_add_f32 v{k['DT2']}, v{TX}, v{TX}
""")
    y(f"""
v_lshlrev_b32 v{TY}, 16, v{R}
v_mul_f32 v{TY}, {L2E}, v{TY}
v_exp_f32 v{TY}, v{TY}
v_lshlrev_b32 v{k['BI']}, 16, v{R+1}
v_cvt_pk_bf16_f32 v{TY}, v{TY}, v{TY}
v_lshlrev_b32 v{k['C']}, 16, v{R+2}
v_and_b32 v{TY}, 0xffff0000, v{TY}
v_lshlrev_b32 v{k['C']+1}, 16, v{R+3}
""")
    m.add(merge(x.l, y.l))
    m(f"""
v_mul_f32 v{k['AR']}, v{TY}, v{k['NDL']}
v_mul_f32 v{k['BI']}, v{k['BI']}, v{k['D2P']}
v_mul_f32 v{k['C']}, v{k['C']}, v{k['DT2']}
v_mul_f32 v{k['C']+1}, v{k['C']+1}, v{k['DT2']}
""")
    m.ds(f"ds_write_addtid_b32 v{CV}")
    x, y, z = Str(), Str(), Str()
    direct(x, TX, k["E16"], 16, conj=True)
    direct(y, TY, k["E256"], 256)
    direct(z, ZX[0], k["E1"], 1)
    m.add(merge(x.l, y.l, z.l))
    x, y = Str(), Str()
    chain(x, TX, ZX, k["E16"], k["E16"], 15, to_lds(1, CV))
    sq(y, TY, k["E2"], k["E1"])
    cmul(y, TY, G, k["C"], k["E256"])
    chain(y, TY, ZY, G, k["E2"], 9, to_reg(P))
    for q in range(1, 7): cmul(y, TY, G + 2 * q, G + 2 * (q - 1), k["E256"])
    m.add(merge(x.l, y.l))
    reads(m, k["BF"], VA, 0, ("a", 1))
    put(m, P, 9, 0)
    reads(m, AF, VA + 1, 0, ("a", 1))
    x, y = Str(), Str()
    chain(x, TX, ZX, k["C"], k["E1"], 16, to_lds(0, CV))
    sq(y, TY, k["E4"], k["E2"]); sq(y, TY, k["E8"], k["E4"])
    mfmas(y, 1, AF)
    chain(y, TY, ZY, G + 2, k["E4"], 5, to_reg(P))
    chain(y, TY, ZY, G + 4, k["E4"], 5, to_reg(P + 5))
    chain(y, TY, ZY, G + 6, k["E8"], 3, to_reg(P + 10))
    chain(y, TY, ZY, G + 8, k["E8"], 3, to_reg(P + 13))
    m.add(merge(x.l, y.l))
    reads(m, AF, VA, 0, ("a", 0))
    put(m, P, 16, 0)
    reads(m, AF2, VA + 2, 0, ("a", 2))
    x, y = Str(), Str()
    chain(x, TX, ZX, G + 10, k["E8"], 3, to_reg(P))
    chain(y, TY, ZY, G + 12, k["E8"], 3, to_reg(P + 3))
    xy = merge(x.l, y.l)
    m.add(xy[:len(xy) // 2])
    mfmas(m, 0, AF)
    reads(m, AF, VA + 2, 5, ("a", 3))
    m.add(xy[len(xy) // 2:])
    mfmas(m, 2, AF2)
    reads(m, AF2, VA + 3, 10, ("a", 4))
    mfmas(m, 3, AF)
    reads(m, AF, VA + 3, 13, ("a", 5))
    put(m, P, 6, 0)
    mfmas(m, 4, AF2)
    reads(m, AF2, VA + 3, 0, ("a", 6))
    mfmas(m, 5, AF)
    reads(m, AF, VA + 3, 3, ("a", 7))
    mfmas(m, 6, AF2)
    mfmas(m, 7, AF)
    if EXP == "nods": m.l = [it for it in m.l if it[0] not in ("ds", "dsw")]
    if EXP == "novalu": m.l = [it for it in m.l if not (it[0] == "i" and it[1].startswith(("v_mul_f32", "v_fma_f32")))]
    if EXP == "nomfma": m.l = [it for it in m.l if not (it[0] == "i" and it[1].startswith("v_mfma"))]
    resolve(m.l, side)
KG["AF2"] = 16

def kg_send(s):
    k = KG
    l1, le = Prog.label("kx1"), Prog.label("kxe")
    t = f"s_nop 7\ns_mul_i32 s38, s{S_UNIT}, {KG_UNIT}\ns_add_u32 s38, s38, {KGS}\nv_lshl_add_u32 v{k['TX']}, v{V_LANE}, 4, s38\n"
    t += f"s_bitcmp1_b32 s{S_UNIT}, 0\ns_cbranch_scc1 {l1}\n"
    for par in (0, 1):
        if par: t += f"{l1}:\n"
        a0 = k["ACC"] + (16 if par == 0 else 0)
        for q in range(4): t += f"ds_write_b128 v{k['TX']}, v[{a0+4*q}:{a0+4*q+3}] offset:{1024*q}\n"
        if par == 0: t += f"s_branch {le}\n"
    t += f"{le}:\ns_waitcnt lgkmcnt(0)\n"
    s.atomic(t)

def kg_finish(s):
    k = KG
    l1, le = Prog.label("kf1"), Prog.label("kfe")
    B = k["AF"]
    t = f"s_xor_b32 s38, s{S_UNIT}, 1\ns_mul_i32 s38, s38, {KG_UNIT}\ns_add_u32 s38, s38, {KGS}\nv_lshl_add_u32 v{k['TX']}, v{V_LANE}, 4, s38\n"
    for q in range(4): t += f"ds_read_b128 v[{B+4*q}:{B+4*q+3}], v{k['TX']} offset:{1024*q}\n"
    t += f"s_mul_i32 s38, s{S_CH}, {KRP}\ns_add_u32 s38, s38, {WS_KR}\n"
    t += f"""v_lshlrev_b32 v{k['DSK']}, 16, v{k['DSK']}
v_cmp_eq_u32 vcc, 0, v{V_LANE}
v_and_b32 v{k['TY']}, 3, v{V_LANE}
v_mov_b32 v{k['TY']+1}, 0
v_lshlrev_b32 v{k['TY']}, 2, v{k['TY']}
s_add_u32 s39, s38, 4096
buffer_store_dword v{k['TY']+1}, v{k['TY']}, s[{S_WS}:{S_WS+3}], s39 offen
s_bitcmp1_b32 s{S_UNIT}, 0
s_cselect_b64 vcc, 0, vcc
s_nop 1
v_cndmask_b32 v{k['DSK']}, 0, v{k['DSK']}, vcc
"""
    t += f"s_bitcmp1_b32 s{S_UNIT}, 0\ns_cbranch_scc0 {l1}\n"
    for r in range(16): t += f"v_mov_b32 v{k['ACC']+r}, v{k['ACC']+16+r}\n"
    t += f"s_sub_u32 s38, s38, 2048\n{l1}:\ns_add_u32 s38, s38, 2048\ns_waitcnt lgkmcnt(0)\n"
    s.atomic(t)
    s(f"v_add_f32 v{k['ACC']}, v{k['ACC']}, v{k['DSK']}")
    for r in range(16): s(f"v_add_f32 v{k['ACC']+r}, v{k['ACC']+r}, v{B+r}")
    for q in range(4):
        acc = k["ACC"] + 4 * q
        c = k["P"] + 2 * q
        s(f"v_cvt_pk_bf16_f32 v{c}, v{acc+3}, v{acc+2}\nv_cvt_pk_bf16_f32 v{c+1}, v{acc+1}, v{acc}")
        s.vm(f"buffer_store_dwordx2 v[{c}:{c+1}], v{k['KO']}, s[{S_WS}:{S_WS+3}], s38 offen offset:{1536 - 512 * q}", "st")

V_UO = 16
def utrans(p, s):
    p(f"""
s_mov_b32 s36, s{S_GP}
s_and_b32 s37, s{S_GP+1}, 0xffff
s_mov_b32 s38, {2048*1152}
s_mov_b32 s39, 0x20000
s_lshr_b32 s44, s2, 3
s_sub_u32 s44, s44, 24
s_lshl_b32 s44, s44, 2
s_sub_u32 s45, s{S_WAVE}, 4
s_add_u32 s46, s44, s45
s_mul_i32 s45, s45, 9216
s_add_u32 s45, s45, {PK}
s_and_b32 s47, s2, 7
s_mul_i32 s40, s46, {64*1152}
s_mul_i32 s41, s47, 144
s_add_u32 s40, s40, s41
""")
    for n in range(9):
        q = 16 + 3 * (n % 2)
        s(f"""
v_add_u32 v{q}, {64 * n}, v{V_LANE}
v_mul_u32_u24 v{q+1}, 7282, v{q}
v_lshrrev_b32 v{q+1}, 16, v{q+1}
v_mul_u32_u24 v{q+2}, 9, v{q+1}
v_sub_u32 v{q+2}, v{q}, v{q+2}
v_mul_u32_u24 v{q+1}, 1152, v{q+1}
s_add_u32 m0, s45, {1024 * n}
v_lshl_add_u32 v{q}, v{q+2}, 4, v{q+1}
""")
        s.vm(f"buffer_load_dwordx4 v{q}, s[36:39], s40 offen lds", "ut")
    s(f"""
v_and_b32 v22, 15, v{V_LANE}
v_lshrrev_b32 v23, 4, v{V_LANE}
v_lshrrev_b32 v24, 2, v22
v_lshl_add_u32 v24, v23, 3, v24
v_mul_u32_u24 v24, 144, v24
v_and_b32 v25, 3, v22
v_lshl_add_u32 v24, v25, 3, v24
v_add_u32 v24, s45, v24
v_lshlrev_b32 v25, 12, v22
v_lshl_add_u32 v25, v23, 4, v25
s_mul_i32 s41, s47, {72 * 4096}
s_lshl_b32 s42, s46, 7
s_add_u32 s41, s41, s42
s_add_u32 s41, s41, {WS_UT}
""")
    s.vmwait("ut")
    for blk in range(5):
        for hf in range(2):
            r = 28 + 4 * ((2 * blk + hf) % 4)
            o = hf * 32 * 144 + 32 * blk
            s.ds(f"ds_read_b64_tr_b16 v[{r}:{r+1}], v24 offset:{o}", ("u", blk, hf))
            s.ds(f"ds_read_b64_tr_b16 v[{r+2}:{r+3}], v24 offset:{o + 576}", ("u", blk, hf))
        if blk == 4: s("s_mov_b32 s42, 0x00ff00ff\ns_mov_b32 s43, 0x00ff00ff\ns_mov_b64 vcc, s[42:43]")
        for hf in range(2):
            r = 28 + 4 * ((2 * blk + hf) % 4)
            s.dswait(("u", blk, hf))
            s(f"s_add_u32 s42, s41, {blk * 16 * 4096 + 64 * hf}")
            if blk == 4: s("s_mov_b64 exec, vcc")
            s.vm(f"buffer_store_dwordx4 v[{r}:{r+3}], v25, s[{S_WS}:{S_WS+3}], s42 offen", "st")
            if blk == 4: s("s_mov_b64 exec, -1")
        s("s_nop 1")

def frag_lds(p, write):
    p(f"s_lshl_b32 s{S_T0}, s{S_J}, 12\ns_add_u32 s{S_T0}, s{S_T0}, {PK}\nv_lshl_add_u32 v16, v{V_LANE}, 4, s{S_T0}")
    for f in range(4):
        if write: p(f"ds_write_b128 v16, v[{V_WPHI+4*f}:{V_WPHI+4*f+3}] offset:{1024*f}")
        else: p(f"ds_read_b128 v[{V_WPHI+4*f}:{V_WPHI+4*f+3}], v16 offset:{1024*f}")

def phiq_base(s):
    s(f"""
s_lshl_b32 s{S_T1}, s{S_TT}, 5
s_lshl_b32 s{S_T0}, s{S_HG}, 2
s_add_u32 s{S_T1}, s{S_T1}, s{S_T0}
s_lshl_b32 s{S_T0}, s{S_J}, 1
s_add_u32 s{S_T1}, s{S_T1}, s{S_T0}
s_lshl_b32 s{S_T1}, s{S_T1}, 1
s_add_u32 s{S_T1}, s{S_T1}, s{S_I}
s_mul_i32 s{S_T1}, s{S_T1}, 2304
s_add_u32 s{S_T1}, s{S_T1}, {WS_PHIQ}
""")

class _P:
    def __init__(self, s): self.s = s
    def __call__(self, t): self.s(t)
    def vm(self, t, tag=None): self.s.vm(t, tag)

def gen_a1(st_on=False, dbg=False):
    p = Prog()
    prologue_common(p)
    stamp(p, 0, st_on)
    srds(p)
    p(f"s_cmp_ge_u32 s{S_WAVE}, {8 + NL}\ns_cbranch_scc1 L_help\ns_cmp_ge_u32 s{S_WAVE}, 8\ns_cbranch_scc1 L_loader\ns_cmp_ge_u32 s{S_WAVE}, 4\ns_cbranch_scc1 L_g1")
    head = p.text()

    p = Prog()
    p(f"""
s_lshl_b32 s{S_T0}, s{S_HG}, 2
s_lshl_b32 s{S_T1}, s{S_J}, 1
s_add_u32 s{S_T0}, s{S_T0}, s{S_T1}
s_mul_i32 s{S_SO}, s{S_T0}, 648
s_lshl_b32 s{S_T0}, s{S_WAVE}, 11
s_add_u32 m0, s{S_T0}, {PK}
v_lshlrev_b32 v16, 4, v{V_LANE}
""")
    p.vm(f"buffer_load_dwordx4 v16, s[{S_PHI}:{S_PHI+3}], s{S_SO} offen lds", "wphi")
    p(f"s_add_u32 m0, m0, 1024\ns_add_u32 s{S_SO}, s{S_SO}, 1024")
    p.vm(f"buffer_load_dwordx4 v16, s[{S_PHI}:{S_PHI+3}], s{S_SO} offen lds", "wphi")
    gemm_addr_setup(p)
    p.vmwait("wphi")
    wphi_gather(p)
    soft_setup(p, True)
    p("s_barrier")
    stamp(p, 1, st_on)
    lsk = Prog.label("nofrag")
    p(f"s_cmp_eq_u32 s{S_I}, 1\ns_cbranch_scc1 {lsk}")
    frag_lds(p, True)
    p(f"{lsk}:")
    gemm_pass(p, 0, st_on)
    s = Side()
    DA, DB = second_stage(s)
    softmax(s, DA); phik_write(s, 0)
    softmax(s, DB); phik_write(s, 1)
    v_setup(_P(s))
    s("s_waitcnt lgkmcnt(0)")
    side_iters(p, list(range(9, 18)), s.split(9, SM_W), st_on)
    gemm_pass(p, 2, st_on)
    s = Side()
    v_write(s)
    emit_items(p, s.items)
    p("s_barrier")
    stamp(p, 29, st_on)
    s = Side()
    kv_partial(s)
    emit_items(p, s.items)
    stamp(p, 30, st_on)
    stamp_dump(p, NSTAMP, st_on)
    p("s_waitcnt vmcnt(0)\ns_branch L_end")
    g0 = p.text()

    def ptrs(p):
        p(f"""
s_load_dwordx4 s[{S_GP}:{S_GP+3}], s[0:1], 32
s_load_dwordx4 s[{S_GP+4}:{S_GP+7}], s[0:1], 48
s_load_dwordx4 s[{S_GP+8}:{S_GP+11}], s[0:1], 64
s_load_dwordx2 s[42:43], s[0:1], 80
""")
    def pass_k_slices(p, sl, frags):
        for n in range(10):
            if n == 2 and frags:
                frag_lds(p, False)
                p("s_waitcnt lgkmcnt(0)")
            emit_items(p, sl[n])
            p("s_barrier")
            stamp(p, n + 1, st_on)
    def kg_slices(extra):
        s = Side(); kgen(s); kg_send(s)
        print("kgen unit cost", s.total(), "instrs", s.ninstr())
        sl = s.split(len(KG_W), KG_W)
        if EXP.startswith("loop"):
            for n in range(1, len(sl)):
                body = [it for it in sl[n] if it[0] == "i" and not it[1].startswith("s_waitcnt") and "\n" not in it[1]]
                if EXP == "loopv": body = [it for it in body if it[1].startswith("v_") and not it[1].startswith("v_mfma")]
                body = body[:28]
                lab = Prog.label("lp")
                sl[n] = [("i", "s_mov_b32 s46, 0")] + [("i", lab + ":")] + body + [("i", f"s_add_u32 s46, s46, 1\ns_cmp_lt_u32 s46, 4\ns_cbranch_scc1 {lab}")]
        if EXP == "twice":
            n = 2
            body = [it for it in sl[n] if it[0] == "i" and not it[1].startswith("s_waitcnt") and "\n" not in it[1]]
            body = [it for it in body if it[1].startswith("v_") and not it[1].startswith("v_mfma")]
            print("twice body", len(body))
            lab = Prog.label("lp")
            sl[n] = [("i", "s_mov_b32 s46, 0\ns_memtime s[90:91]")] + [("i", lab + ":")] + body + [("i", f"s_cmp_eq_u32 s46, 1\ns_cbranch_scc1 {lab}e\ns_memtime s[92:93]\ns_mov_b32 s46, 1\ns_branch {lab}\n{lab}e:\ns_memtime s[94:95]")]
        f = Side(); kg_finish(f)
        sl.append(f.items)
        sl += extra
        assert len(sl) == 10, len(sl)
        return sl
    nrest = 10 - len(KG_W) - 1
    p = Prog()
    p("L_g1:")
    ptrs(p)
    gemm_addr_setup(p)
    p(f"""
s_waitcnt lgkmcnt(0)
s_sub_u32 s{S_UNIT}, s{S_WAVE}, 4
s_cmp_ge_u32 s2, 192
s_cbranch_scc1 L_idle
""")
    kg_setup(p)
    pass_k_slices(p, kg_slices([[] for _ in range(nrest)]), True)
    p("s_branch L_g1q")
    p("L_idle:")
    p.vmq = []
    s = Side(); utrans(p, s)
    pass_k_slices(p, [[], [], []] + s.split(5) + [[], []], True)
    p("L_g1q:")
    p.vmq = []
    soft_setup(p, False)
    gemm_pass(p, 1, st_on)
    s = Side()
    phiq_base(s)
    DA, DB = second_stage(s)
    softmax(s, DA); phiq_store(s, 0)
    softmax(s, DB); phiq_store(s, 1)
    side_iters(p, list(range(18, 27)), s.split(9, SM_W), st_on)
    p("s_barrier")
    stamp(p, 29, st_on)
    stamp(p, 30, st_on)
    stamp_dump(p, NSTAMP, st_on)
    p("s_waitcnt vmcnt(0)\ns_branch L_end")
    g1 = p.text()

    p = Prog()
    p("L_help:")
    ptrs(p)
    p(f"""
s_waitcnt lgkmcnt(0)
s_sub_u32 s{S_UNIT}, s{S_WAVE}, {8 + NL - 4}
""")
    p(f"s_cmp_ge_u32 s2, 192\ns_cbranch_scc1 L_hidle")
    kg_setup(p)
    sl_kg = kg_slices([[] for _ in range(nrest)])
    nk = 10 - nrest
    def run(p, sl, n0, n1):
        for n in range(n0, n1):
            emit_items(p, sl[n])
            p("s_barrier")
            stamp(p, n + 1, st_on)
    run(p, sl_kg, 0, 10)
    p("s_branch L_hrest")
    p("L_hidle:")
    run(p, [[] for _ in range(10)], 0, 10)
    p("L_hrest:")
    if FILL: fill_words(p)
    for b in range(9, 27):
        p("s_barrier")
        stamp(p, b + 2, st_on)
    p("s_barrier")
    stamp(p, 29, st_on)
    stamp(p, 30, st_on)
    p.vmq = []
    stamp_dump(p, NSTAMP, st_on)
    p("s_waitcnt vmcnt(0)\ns_branch L_end")
    hl = p.text()
    return head + g0 + g1 + hl + "L_loader:\n" + gen_loader(st_on) + "L_end:\n"

def fill_words(p):
    lk, le = Prog.label("fk"), Prog.label("fe")
    p(f"""
v_mov_b32 v16, -1
v_mov_b32 v17, -1
v_mov_b32 v18, -1
v_mov_b32 v19, -1
v_lshlrev_b32 v20, 4, v{V_LANE}
s_and_b32 s{S_T0}, s2, 7
s_mul_i32 s{S_T0}, s{S_T0}, {72 * 4096}
s_lshr_b32 s{S_T1}, s2, 3
s_mul_i32 s{S_T1}, s{S_T1}, 9216
s_add_u32 s{S_T0}, s{S_T0}, s{S_T1}
s_sub_u32 s{S_T1}, s{S_WAVE}, {8 + NL}
s_mul_i32 s{S_T1}, s{S_T1}, 5120
s_add_u32 s{S_T0}, s{S_T0}, s{S_T1}
s_add_u32 s{S_T0}, s{S_T0}, {WS_YT}
""")
    for k in range(5):
        if k == 4: p(f"s_cmp_lg_u32 s{S_WAVE}, {8 + NL}\ns_cbranch_scc1 {lk}")
        p(f"s_add_u32 s{S_T1}, s{S_T0}, {1024 * k}")
        p.vm(f"buffer_store_dwordx4 v[16:19], v20, s[{S_WS}:{S_WS+3}], s{S_T1} offen sc1", "st")
    p(f"""
s_branch {le}
{lk}:
s_cmp_ge_u32 s2, 45
s_cbranch_scc1 {le}
s_lshl_b32 s{S_T1}, s2, 10
s_add_u32 s{S_T1}, s{S_T1}, {WS_KVZ}
""")
    p.vm(f"buffer_store_dwordx4 v[16:19], v20, s[{S_WS}:{S_WS+3}], s{S_T1} offen sc1", "st")
    p(f"{le}:")
    if PREF: wo_touch(p)

def wo_touch(p):
    p(f"""
s_load_dwordx2 s[44:45], s[0:1], 24
s_lshr_b32 s{S_T0}, s2, 3
s_mul_i32 s{S_T0}, s{S_T0}, 20736
s_sub_u32 s{S_T1}, s{S_WAVE}, {8 + NL}
s_mul_i32 s{S_T1}, s{S_T1}, 10368
s_add_u32 s{S_T0}, s{S_T0}, s{S_T1}
v_lshlrev_b32 v20, 6, v{V_LANE}
v_add_u32 v20, s{S_T0}, v20
s_waitcnt lgkmcnt(0)
""")
    for k in range(3):
        p(f"v_min_u32 v21, {576 * 1152 - 4}, v20")
        p.vm(f"global_load_dword v{22 + k}, v21, s[44:45]", "pf")
        p("v_add_u32 v20, 0x1000, v20")

PREF = True
FILL = False
KG_W = [1.2] + [1] * 8
EXP = ""
WARM = 10
SM_W = [1] * 8 + [0.3]
if __name__ == "__main__":
    import sys
    for a in sys.argv[1:]:
        if a.startswith("NL="): NL = int(a[3:])
        if a.startswith("EXP="): EXP = a[4:]
        if a.startswith("WARM="): WARM = int(a[5:])
    body = gen_a1(st_on=True, dbg="dbg" in sys.argv)
    open(f"k1{EXP}.s", "w").write(program([dict(name=KNAME, body=body, grid=256, block=512 + 64 * NL + 128, lds=LDS_END, vgpr=NVGPR)], single=True))
```

```python
from dsl import *
from k1 import WS_PHIQ, WS_PART, WS_KVZ, WS_UT, WS_KR, WS_YT, KRP, WS_STAMP
import k2
from k2 import CB, OC1, OU, VA, VB, VY, FA, FB, class_reads, conv_class
import k3
from k3 import div9, slot_of, tile_lane, o_mfmas, PQ, PD, KA, K3, ACC, OUTR, LO, DEN

IMA = 0
IML = 32768
WO = 40960
IMB = WO + 83 * 1008
CONV = IMB
FLG = CONV + 3 * CB
LDS23 = FLG + 16
assert LDS23 <= 163840 and IMB + 32768 <= LDS23
BIMG = 9216

S_WS, S_WOP, S_OUT = 8, 12, 16
S_WAVE, S_E, S_R, S_TT, S_CT = 24, 25, 26, 27, 28
S_T0, S_T1, S_T2, S_T3 = 29, 30, 31, 32
S_CH = 33
S_M63, S_LO, S_HI = 34, 36, 38
S_PQB, S_KVB, S_W1, S_TRY = 40, 41, 42, 43
V_LANE = 1
NV = 256
NST = 12
RETRY = 4096
EXP = ""
KVPOS = 8
CACC = 16

def stamp(p, i, on):
    if on: p(f"s_memtime s[{48 + 2 * i}:{49 + 2 * i}]")

def stamp_dump(p, on):
    if not on: return
    p("s_waitcnt lgkmcnt(0)")
    p(f"s_lshl_b32 s{S_T0}, s2, 4\ns_add_u32 s{S_T0}, s{S_T0}, s{S_WAVE}\ns_lshl_b32 s{S_T0}, s{S_T0}, 7\ns_add_u32 s{S_T0}, s{S_T0}, {WS_STAMP + 0x100000}")
    p("v_mov_b32 v2, 0")
    for i in range(NST):
        p(f"v_mov_b32 v3, s{48 + 2 * i}")
        p.vm(f"buffer_store_dword v3, v2, s[{S_WS}:{S_WS+3}], s{S_T0} offen offset:{4 * i}")
    p(f"v_mov_b32 v3, s{S_TRY}")
    p.vm(f"buffer_store_dword v3, v2, s[{S_WS}:{S_WS+3}], s{S_T0} offen offset:{4 * NST}")

def prologue(p, on):
    p(f"""
s_cmp_ge_u32 s2, 256
s_cbranch_scc1 L2_end
s_load_dwordx2 s[4:5], s[0:1], 104
s_load_dwordx2 s[6:7], s[0:1], 24
s_load_dwordx2 s[20:21], s[0:1], 88
v_and_b32 v{V_LANE}, 63, v0
v_lshrrev_b32 v2, 6, v0
s_and_b32 s{S_E}, s2, 7
s_lshr_b32 s{S_R}, s2, 3
v_readfirstlane_b32 s{S_WAVE}, v2
""")
    stamp(p, 0, on)
    p(f"""
s_lshl_b32 s{S_TT}, s{S_E}, 2
s_and_b32 s{S_T0}, s{S_R}, 3
s_add_u32 s{S_TT}, s{S_TT}, s{S_T0}
s_lshr_b32 s{S_CT}, s{S_R}, 2
s_mov_b32 s{S_M63}, -1
s_mov_b32 s{S_M63+1}, 0x7fffffff
s_mov_b32 s{S_LO}, -1
s_mov_b32 s{S_LO+1}, 0
s_mov_b32 s{S_HI}, 0
s_mov_b32 s{S_HI+1}, -1
s_mov_b32 s{S_TRY}, {RETRY}
s_mul_i32 s{S_CH}, s{S_E}, 72
s_mul_i32 s{S_T0}, s{S_R}, 3
s_add_u32 s{S_CH}, s{S_CH}, s{S_T0}
s_add_u32 s{S_CH}, s{S_CH}, s{S_WAVE}
s_waitcnt lgkmcnt(0)
s_mov_b32 s{S_WS}, s4
s_and_b32 s{S_WS+1}, s5, 0xffff
s_mov_b32 s{S_WS+2}, 0x10000000
s_mov_b32 s{S_WS+3}, 0x20000
s_mov_b32 s{S_WOP}, s6
s_and_b32 s{S_WOP+1}, s7, 0xffff
s_mov_b32 s{S_WOP+2}, {576*1152}
s_mov_b32 s{S_WOP+3}, 0x20000
s_mov_b32 s{S_OUT}, s20
s_and_b32 s{S_OUT+1}, s21, 0xffff
s_mov_b32 s{S_OUT+2}, {2048*2304}
s_mov_b32 s{S_OUT+3}, 0x20000
""")

def conv_loads(p):
    p(f"""
v_lshlrev_b32 v2, 4, v{V_LANE}
s_mul_i32 s{S_T0}, s{S_WAVE}, {CB}
s_add_u32 s{S_T0}, s{S_T0}, {CONV}
s_mul_i32 s{S_T1}, s{S_CH}, {KRP}
s_add_u32 s{S_T1}, s{S_T1}, {WS_KR}
s_lshl_b32 s{S_T2}, s{S_CH}, 12
s_add_u32 s{S_T2}, s{S_T2}, {WS_UT}
""")
    for kb in range(4):
        for dst, src, o in ((OU + 480, S_T2, 0), (0, S_T1, 0), (OC1, S_T1, 2)):
            p(f"s_add_u32 m0, s{S_T0}, {dst + kb * 1024}\ns_add_u32 s{S_T3}, s{src}, {kb * 1024 + o}")
            p.vm(f"buffer_load_dwordx4 v2, s[{S_WS}:{S_WS+3}], s{S_T3} offen lds", "cv")

def conv_setup(p):
    p(f"""
v_mov_b32 v12, 0
v_mov_b32 v13, 0
v_min_u32 v2, 59, v{V_LANE}
v_lshlrev_b32 v2, 3, v2
v_add_u32 v2, s{S_T0}, v2
ds_write_b64 v2, v[12:13] offset:{OU}
v_and_b32 v2, 31, v{V_LANE}
v_lshrrev_b32 v3, 4, v2
v_mul_u32_u24 v3, {OC1 - 64}, v3
v_lshl_add_u32 v2, v2, 2, v3
v_add_u32 v2, s{S_T0}, v2
ds_write_b32 v2, v12 offset:4096
v_and_b32 v2, 15, v{V_LANE}
v_lshrrev_b32 v3, 4, v{V_LANE}
v_lshlrev_b32 v11, 5, v2
v_lshl_add_u32 v11, v3, 4, v11
v_add_u32 v{VB}, s{S_T0}, v11
v_add_u32 v{VB}, {OU}, v{VB}
v_lshlrev_b32 v11, 3, v3
v_sub_u32 v11, v11, v2
v_and_b32 v12, 1, v2
v_xor_b32 v12, 1, v12
v_sub_u32 v11, v11, v12
v_lshlrev_b32 v11, 1, v11
v_mul_u32_u24 v12, {OC1}, v12
v_add3_u32 v11, v11, v12, s{S_T0}
""")
    for q in range(4):
        p(f"v_add_u32 v{VA+q}, {2 * 2031 - 1024 * q - 960}, v11")
    p(f"""
v_and_b32 v11, 1, v3
v_lshlrev_b32 v11, 9, v11
v_lshl_add_u32 v11, v2, 5, v11
v_lshrrev_b32 v12, 1, v3
v_lshl_add_u32 v{VY}, v12, 4, v11
""")

def conv_main(p):
    for x in class_reads(0, 0): p(x)
    for k in range(8):
        conv_class(p, k & 1, CACC, k == 0, class_reads(k + 1, (k + 1) & 1) if k < 7 else [])

def conv_finish(p):
    c = FB[0]
    p(f"s_lshl_b32 s{S_T0}, s{S_CH}, 12\ns_add_u32 s{S_T0}, s{S_T0}, {WS_YT}\ns_nop 6")
    for k in range(8):
        p(f"v_cvt_pk_bf16_f32 v{c+2*k}, v{CACC+4*k}, v{CACC+4*k+1}\nv_cvt_pk_bf16_f32 v{c+2*k+1}, v{CACC+4*k+2}, v{CACC+4*k+3}")
    for k in range(4):
        r = c + 4 * k
        p(f"v_permlane16_swap_b32 v{r}, v{r+2}\nv_permlane16_swap_b32 v{r+1}, v{r+3}")
    for k in range(4):
        r = c + 4 * k
        p.vm(f"buffer_store_dwordx4 v[{r}:{r+3}], v{VY}, s[{S_WS}:{S_WS+3}], s{S_T0} offen offset:{1024*k} sc1", "st")

def reduce_part(p):
    L, A = 16, 64
    p(f"""
s_sub_u32 s{S_T2}, s2, 192
s_lshl_b32 s{S_T2}, s{S_T2}, 2
s_add_u32 s{S_T2}, s{S_T2}, s{S_WAVE}
s_lshr_b32 s{S_T0}, s{S_T2}, 3
s_and_b32 s{S_T1}, s{S_T2}, 7
s_mul_i32 s{S_T1}, s{S_T1}, 12
v_and_b32 v2, 15, v{V_LANE}
v_add_u32 v3, s{S_T1}, v2
v_cmp_gt_u32 vcc, 12, v2
v_cmp_gt_u32 s[44:45], 16, v{V_LANE}
s_and_b64 s[44:45], s[44:45], vcc
v_cmp_gt_u32 vcc, 90, v3
s_and_b64 s[44:45], s[44:45], vcc
v_min_u32 v3, 89, v3
v_lshlrev_b32 v3, 4, v3
v_lshrrev_b32 v4, 4, v{V_LANE}
v_mul_u32_u24 v4, {8 * 4 * 1440}, v4
v_add_u32 v4, v4, v3
s_lshr_b32 s{S_T1}, s{S_T0}, 2
s_lshl_b32 s{S_T1}, s{S_T1}, 7
s_and_b32 s{S_T2}, s{S_T0}, 3
s_add_u32 s{S_T1}, s{S_T1}, s{S_T2}
s_mul_i32 s{S_T1}, s{S_T1}, 1440
s_add_u32 s{S_T1}, s{S_T1}, {WS_PART}
s_mul_i32 s{S_T0}, s{S_T0}, 1440
s_add_u32 s{S_T0}, s{S_T0}, {WS_KVZ}
""")
    for k in range(8):
        p(f"s_add_u32 s{S_T2}, s{S_T1}, {k * 4 * 1440}")
        p.vm(f"buffer_load_dwordx4 v[{L+4*k}:{L+4*k+3}], v4, s[{S_WS}:{S_WS+3}], s{S_T2} offen", ("pt", k))
    p("s_barrier")
    for k in range(8):
        p.vmwait([("pt", k)])
        for i in range(4):
            if k == 0:
                p(f"v_lshlrev_b32 v{A+2*i}, 16, v{L+i}\nv_and_b32 v{A+2*i+1}, 0xffff0000, v{L+i}")
            else:
                t = 12 + 2 * (i & 1)
                p(f"v_lshlrev_b32 v{t}, 16, v{L+4*k+i}\nv_and_b32 v{t+1}, 0xffff0000, v{L+4*k+i}")
                p(f"v_add_f32 v{A+2*i}, v{A+2*i}, v{t}\nv_add_f32 v{A+2*i+1}, v{A+2*i+1}, v{t+1}")
    p("s_nop 1")
    for i in range(4): p(f"v_permlane32_swap_b32 v{A+i}, v{A+4+i}")
    p("s_nop 0")
    for i in range(4): p(f"v_add_f32 v{A+i}, v{A+i}, v{A+4+i}")
    for i in range(4): p(f"v_mov_b32 v{A+4+i}, v{A+i}")
    p("s_nop 1")
    for i in range(4): p(f"v_permlane16_swap_b32 v{A+i}, v{A+4+i}")
    p("s_nop 0")
    for i in range(4): p(f"v_add_f32 v{A+i}, v{A+i}, v{A+4+i}")
    p(f"""
v_cvt_pk_bf16_f32 v{L}, v{A}, v{A+1}
v_cvt_pk_bf16_f32 v{L+1}, v{A+2}, v{A+3}
v_mov_b32 v{L+2}, v{L}
v_mov_b32 v{L+3}, v{L+1}
s_nop 1
v_permlane32_swap_b32 v{L}, v{L+2}
v_permlane32_swap_b32 v{L+1}, v{L+3}
s_mov_b64 exec, s[44:45]
""")
    p.vm(f"buffer_store_dwordx4 v[{L}:{L+3}], v3, s[{S_WS}:{S_WS+3}], s{S_T0} offen sc1", "st")
    p("s_mov_b64 exec, -1")

def wo_loads(p):
    a, b, t = 2, 3, 5
    div9(p, a, b, V_LANE, t)
    for par, c in ((0, 6), (1, 7)):
        p(f"""
v_add_u32 v{c}, {par}, v{a}
v_and_b32 v{c}, 1, v{c}
v_add3_u32 v{c}, v{b}, v{c}, 7
v_mul_u32_u24 v{c}, 7, v{c}
v_mul_u32_u24 v{t}, 57, v{c}
v_lshrrev_b32 v{t}, 9, v{t}
v_mul_u32_u24 v{t}, 9, v{t}
v_sub_u32 v{c}, v{c}, v{t}
v_mul_u32_u24 v{t}, 1152, v{a}
v_lshl_add_u32 v{c}, v{c}, 4, v{t}
""")
    p(f"s_mul_i32 s{S_T1}, s{S_CT}, 144\ns_mov_b64 exec, s[{S_M63}:{S_M63+1}]")
    for g in range(83):
        p(f"s_mov_b32 m0, {WO + g * 1008}\ns_add_u32 s{S_T2}, s{S_T1}, {g * 7 * 1152}")
        p.vm(f"buffer_load_dwordx4 v{6 + (g & 1)}, s[{S_WOP}:{S_WOP+3}], s{S_T2} offen lds", "wo")
    p("s_mov_b64 exec, -1")

BR = 64
def bfinal_addr(p, g, A, part):
    if part == 0:
        p(f"""
v_lshrrev_b32 v{A}, 3, v{V_LANE}
s_lshl_b32 s{S_T0}, s{g}, 3
v_add_u32 v{A}, s{S_T0}, v{A}
v_and_b32 v{A+2}, 7, v{V_LANE}
v_lshlrev_b32 v{A+1}, 12, v{A}
v_lshl_add_u32 v{A+1}, v{A+2}, 4, v{A+1}
""")
    else:
        p(f"""
v_bfe_u32 v{A+3}, v{A}, 1, 1
v_bfe_u32 v12, v{A}, 3, 1
v_lshl_add_u32 v{A+3}, v12, 1, v{A+3}
v_lshlrev_b32 v{A+3}, 1, v{A+3}
v_xor_b32 v{A+2}, v{A+2}, v{A+3}
v_lshlrev_b32 v{A}, 7, v{A}
v_lshl_add_u32 v{A}, v{A+2}, 4, v{A}
""")

S_YB = 46
def bfinal_setup(p, part):
    if part == 0:
        p(f"s_mov_b32 s{S_T3}, s{S_W1}")
        bfinal_addr(p, S_T3, BR + 4, 0)
        p(f"s_add_u32 s{S_T3}, s{S_W1}, 4")
        bfinal_addr(p, S_T3, BR + 12, 0)
        p(f"s_mov_b32 s{S_T3}, 8")
        bfinal_addr(p, S_T3, BR + 20, 0)
        p(f"""
s_mul_i32 s{S_YB}, s{S_E}, {72*4096}
s_lshl_b32 s{S_T1}, s{S_R}, 7
s_add_u32 s{S_YB}, s{S_YB}, s{S_T1}
s_add_u32 s{S_YB}, s{S_YB}, {WS_YT}
""")
    else:
        for k in range(3): bfinal_addr(p, None, BR + 4 + 8 * k, 1)

def bfinal_loads(p):
    lsk = Prog.label("bl")
    for k in range(3):
        if k == 2: p(f"s_cmp_lg_u32 s{S_W1}, 0\ns_cbranch_scc1 {lsk}")
        R = BR + 8 * k
        p(f"buffer_load_dwordx4 v[{R}:{R+3}], v{R+5}, s[{S_WS}:{S_WS+3}], s{S_YB} offen sc1")
    p(f"{lsk}:")

def bfinal_check(p):
    lo, lk, l2 = Prog.label("bc"), Prog.label("bk"), Prog.label("b2")
    t = BR + 7
    p(f"""
{lo}:
s_waitcnt vmcnt(0)
v_max3_u32 v{t}, v{BR}, v{BR+1}, v{BR+2}
v_max3_u32 v{t}, v{t}, v{BR+3}, v{BR+8}
v_max3_u32 v{t}, v{t}, v{BR+9}, v{BR+10}
v_max_u32 v{t}, v{t}, v{BR+11}
s_cmp_lg_u32 s{S_W1}, 0
s_cbranch_scc1 {l2}
v_max3_u32 v{t}, v{t}, v{BR+16}, v{BR+17}
v_max3_u32 v{t}, v{t}, v{BR+18}, v{BR+19}
{l2}:
v_cmp_eq_u32 vcc, -1, v{t}
s_cbranch_vccz {lk}
s_cmp_eq_u32 s{S_TRY}, 0
s_cbranch_scc1 {lk}
s_sub_u32 s{S_TRY}, s{S_TRY}, 1
""")
    bfinal_loads(p)
    p(f"s_branch {lo}\n{lk}:")

def bfinal_stage(p):
    lsk = Prog.label("bs")
    p(f"ds_write_b128 v{BR+4}, v[{BR}:{BR+3}] offset:{BIMG}")
    p(f"ds_write_b128 v{BR+12}, v[{BR+8}:{BR+11}] offset:{BIMG}")
    p(f"s_cmp_lg_u32 s{S_W1}, 0\ns_cbranch_scc1 {lsk}")
    p(f"ds_write_b128 v{BR+20}, v[{BR+16}:{BR+19}] offset:{BIMG}")
    p(f"{lsk}:")

V_Q16, V_Q4, V_KS, V_KS4, V_IW, V_LW, V_IW2, V_CK = 2, 3, 4, 5, 6, 7, 11, 12
def ostage_setup(p):
    w = S_W1
    p(f"""
v_lshlrev_b32 v{V_Q16}, 4, v{V_LANE}
v_lshlrev_b32 v{V_Q4}, 2, v{V_LANE}
v_and_b32 v8, 31, v{V_LANE}
v_lshrrev_b32 v9, 5, v{V_LANE}
v_min_u32 v10, 19, v8
v_mul_u32_u24 v9, 20, v9
v_add_u32 v10, v10, v9
v_lshlrev_b32 v{V_KS}, 4, v10
v_lshlrev_b32 v{V_KS4}, 2, v10
s_lshl_b32 s{S_T0}, s{S_TT}, 5
s_lshl_b32 s{S_T1}, s{w}, 3
s_add_u32 s{S_T0}, s{S_T0}, s{S_T1}
s_mul_i32 s{S_PQB}, s{S_T0}, {2*2304}
s_add_u32 s{S_PQB}, s{S_PQB}, {WS_PHIQ}
s_mul_i32 s{S_KVB}, s{S_T1}, 1440
s_add_u32 s{S_KVB}, s{S_KVB}, {WS_KVZ}
s_lshl_b32 s{S_T0}, s{w}, 13
v_add_u32 v{V_IW}, s{S_T0}, v{V_Q16}
v_add_u32 v{V_IW2}, {IMB}, v{V_IW}
s_lshl_b32 s{S_T0}, s{w}, 11
s_add_u32 s{S_T0}, s{S_T0}, {IML}
v_lshlrev_b32 v{V_LW}, 4, v8
v_add_u32 v{V_LW}, s{S_T0}, v{V_LW}
""")
    for q in range(4):
        for r in range(4):
            if r != q: p(f"v_mov_b32 v{K3+4*q+r}, 0")

def phiq_loads(p, hl):
    for i in range(2):
        p(f"s_add_u32 s{S_T2}, s{S_PQB}, {(2 * hl + i) * 2304}")
        r = PQ + 16 * hl + 8 * i
        p.vm(f"buffer_load_dwordx4 v[{r}:{r+3}], v{V_Q16}, s[{S_WS}:{S_WS+3}], s{S_T2} offen", ("pq", hl))
        p.vm(f"buffer_load_dwordx4 v[{r+4}:{r+7}], v{V_Q16}, s[{S_WS}:{S_WS+3}], s{S_T2} offen offset:1024", ("pq", hl))
        p.vm(f"buffer_load_dword v{PD + 4 * (2 * (hl >> 2) + i) + (hl & 3)}, v{V_Q4}, s[{S_WS}:{S_WS+3}], s{S_T2} offen offset:2048", ("pq", hl))

def kvz_text(hl):
    q = hl & 3
    return [f"s_add_u32 s{S_T2}, s{S_KVB}, {hl * 1440}",
            f"buffer_load_dwordx4 v[{KA+8*q}:{KA+8*q+3}], v{V_KS}, s[{S_WS}:{S_WS+3}], s{S_T2} offen sc1",
            f"buffer_load_dwordx4 v[{KA+8*q+4}:{KA+8*q+7}], v{V_KS}, s[{S_WS}:{S_WS+3}], s{S_T2} offen offset:640 sc1",
            f"buffer_load_dword v{K3+4*q+q}, v{V_KS4}, s[{S_WS}:{S_WS+3}], s{S_T2} offen offset:1280 sc1"]

def kvz_loads(p, hl):
    t = kvz_text(hl)
    p(t[0])
    for x in t[1:]: p.vm(x, ("kv", hl))

def kvz_check_text(hl):
    q = hl & 3
    a = KA + 8 * q
    return f"""
v_max3_u32 v{V_CK}, v{a}, v{a+1}, v{a+2}
v_max3_u32 v{V_CK}, v{V_CK}, v{a+3}, v{a+4}
v_max3_u32 v{V_CK}, v{V_CK}, v{a+5}, v{a+6}
v_max3_u32 v{V_CK}, v{V_CK}, v{a+7}, v{K3+4*q+q}
v_cmp_eq_u32 vcc, -1, v{V_CK}
"""

def kvz_need(p, hl, slow):
    p.vmwait([("kv", hl), ("pq", hl)])
    ls, lb = Prog.label("kvs"), Prog.label("kvb")
    p(kvz_check_text(hl))
    p(f"s_cbranch_vccnz {ls}\n{lb}:")
    slow(f"{ls}:\ns_cmp_eq_u32 s{S_TRY}, 0\ns_cbranch_scc1 {lb}\ns_sub_u32 s{S_TRY}, s{S_TRY}, 1")
    for x in kvz_text(hl): slow(x)
    slow("s_waitcnt vmcnt(0)")
    slow(kvz_check_text(hl))
    slow(f"s_cbranch_vccnz {ls}\ns_branch {lb}")

def o_epilogue(hl, i):
    acc = ACC[i]
    o = OUTR
    t = [f"v_add_f32 v{DEN}, 0x358637bd, v{acc+10}",
         f"v_rcp_f32 v{DEN}, v{DEN}"]
    for r in range(10): t.append(f"v_mul_f32 v{acc+r}, v{acc+r}, v{DEN}")
    for r in range(4): t.append(f"v_cvt_pk_bf16_f32 v{o+r}, v{acc+2*r}, v{acc+2*r+1}")
    t.append(f"v_cvt_pk_bf16_f32 v{LO + 4 * i + (hl & 3)}, v{acc+8}, v{acc+9}")
    iw = V_IW if hl < 4 else V_IW2
    t.append(f"ds_write_b128 v{iw}, v[{o}:{o+3}] offset:{(hl & 3) * 2048 + i * 1024}")
    if hl & 3 == 3:
        t.append(f"s_mov_b64 exec, s[{S_LO}:{S_LO+1}]")
        t.append(f"ds_write_b128 v{V_LW}, v[{LO+4*i}:{LO+4*i+3}] offset:{i * 1024 + (hl >> 2) * 512}")
        t.append("s_mov_b64 exec, -1")
    return t
CUTS = (0, 2, 7)

def ostage(p, on, slow):
    units = [(hl, i) for hl in range(8) for i in range(2)]
    kvz_need(p, 0, slow)
    stamp(p, 2, on)
    for x in o_mfmas(0, 0): p(x)
    p("s_nop 7\ns_nop 2")
    for n, (hl, i) in enumerate(units):
        nx = units[n + 1] if n + 1 < len(units) else None
        m = []
        if nx:
            if nx[1] == 0: kvz_need(p, nx[0], slow)
            m = o_mfmas(*nx)
        else:
            p("s_nop 1")
        ep = o_epilogue(hl, i)
        if not nx: ep.insert(2, "s_nop 0")
        if (hl, i) == (4, 0):
            stamp(p, 3, on)
            k = next(j for j, x in enumerate(ep) if x.startswith("ds_write"))
            ep.insert(k, "s_waitcnt lgkmcnt(0)\ns_barrier")
        if m:
            cuts = CUTS
            for k in range(3):
                p(m[k])
                for x in ep[cuts[k]:cuts[k + 1] if k < 2 else len(ep)]: p(x)
        else:
            for x in ep: p(x)
        if nx and nx[1] == 1 and nx[0] + 4 < 8:
            kvz_loads(p, nx[0] + 4)
    p("s_waitcnt lgkmcnt(0)")

V_OB, V_OB2, V_WM, V_WM2, V_WL, V_WL2 = 48, 49, 50, 51, 52, 53
R_OB, R_OB2, R_WM, R_WM2, R_WL = 54, 55, 56, 57, 58
V_SM, V_SR = 60, 61
GT = 68
GACC = 96
RACC = 64
def o_read(s, B, ob, ob2):
    if s >= 32: return f"ds_read_b128 v[{B}:{B+3}], v{ob} offset:{IML + (s - 32) * 2048}"
    w, hl = s >> 3, s & 7
    return f"ds_read_b128 v[{B}:{B+3}], v{ob if hl < 4 else ob2} offset:{(4 * w + (hl & 3)) * 2048}"

def gemm_setup(p):
    p(f"""
s_and_b32 s{S_T0}, s{S_WAVE}, 1
s_lshl_b32 s{S_T0}, s{S_T0}, 10
v_lshl_add_u32 v{V_OB}, v{V_LANE}, 4, s{S_T0}
v_add_u32 v{V_OB2}, {IMB}, v{V_OB}
v_bfe_u32 v{GT+0}, v{V_LANE}, 4, 1
v_bfe_u32 v{GT+1}, v{V_LANE}, 1, 1
v_lshl_add_u32 v{GT+0}, v{GT+0}, 1, v{GT+1}
s_lshr_b32 s{S_T0}, s{S_WAVE}, 1
s_mul_i32 s{S_T0}, s{S_T0}, 5
v_add_u32 v{GT+0}, s{S_T0}, v{GT+0}
v_bfe_u32 v{GT+1}, v{V_LANE}, 2, 2
v_and_b32 v{GT+2}, 1, v{GT+1}
""")
    slot_of(p, GT + 3, GT, GT + 2, GT + 4)
    p(f"""
v_and_b32 v{GT+4}, 1, v{V_LANE}
v_lshlrev_b32 v{GT+4}, 3, v{GT+4}
v_lshl_add_u32 v{GT+3}, v{GT+3}, 4, v{GT+4}
v_add_u32 v{GT+3}, {WO}, v{GT+3}
v_lshrrev_b32 v{GT+4}, 5, v{V_LANE}
v_lshl_add_u32 v{GT+5}, v{GT+4}, 2, v{GT+1}
v_mul_u32_u24 v{GT+5}, 144, v{GT+5}
v_add_u32 v{V_WM}, v{GT+5}, v{GT+3}
v_add_u32 v{V_WM2}, {16 * 2592}, v{V_WM}
v_mul_u32_u24 v{GT+5}, 72, v{GT+4}
v_lshrrev_b32 v{GT+6}, 1, v{GT+1}
v_mul_u32_u24 v{GT+6}, 18, v{GT+6}
v_add3_u32 v{GT+5}, v{GT+5}, v{GT+6}, v{GT+2}
v_add_u32 v{GT+5}, 16, v{GT+5}
v_mul_u32_u24 v{GT+5}, 144, v{GT+5}
v_add_u32 v{V_WL}, v{GT+5}, v{GT+3}
v_add_u32 v{V_WL2}, {36 * 144}, v{V_WL}
s_lshr_b32 s{S_T1}, s{S_WAVE}, 1
s_lshl_b32 s{S_T1}, s{S_T1}, 10
s_and_b32 s{S_T0}, s{S_WAVE}, 1
s_lshl_b32 s{S_T0}, s{S_T0}, 8
s_add_u32 s{S_T0}, s{S_T0}, s{S_T1}
v_and_b32 v{GT+0}, 15, v{V_LANE}
v_lshrrev_b32 v{GT+1}, 4, v{V_LANE}
v_lshrrev_b32 v{GT+2}, 1, v{GT+1}
v_and_b32 v{GT+3}, 1, v{GT+1}
v_lshlrev_b32 v{GT+4}, 11, v{GT+2}
v_lshl_add_u32 v{GT+4}, v{GT+3}, 9, v{GT+4}
v_lshl_add_u32 v{GT+4}, v{GT+0}, 4, v{GT+4}
v_add_u32 v{R_OB}, s{S_T0}, v{GT+4}
v_add_u32 v{R_OB2}, {IMB}, v{R_OB}
v_bfe_u32 v{GT+4}, v{V_LANE}, 2, 2
v_and_b32 v{GT+5}, 1, v{GT+4}
v_lshlrev_b32 v{GT+6}, 3, v{GT+5}
v_and_b32 v{GT+7}, 1, v{V_LANE}
v_lshlrev_b32 v{GT+7}, 3, v{GT+7}
v_lshl_add_u32 v{GT+6}, v{GT+6}, 4, v{GT+7}
v_add_u32 v{GT+6}, {WO}, v{GT+6}
v_mul_u32_u24 v{GT+7}, 18, v{GT+2}
v_lshl_add_u32 v{GT+7}, v{GT+3}, 2, v{GT+7}
v_add_u32 v{GT+7}, v{GT+7}, v{GT+4}
v_mul_u32_u24 v{GT+7}, 144, v{GT+7}
v_add_u32 v{R_WM}, v{GT+7}, v{GT+6}
v_add_u32 v{R_WM2}, {16 * 2592}, v{R_WM}
v_mul_u32_u24 v{GT+7}, 144, v{GT+2}
v_mul_u32_u24 v{GT+0}, 72, v{GT+3}
v_add_u32 v{GT+7}, v{GT+7}, v{GT+0}
v_lshrrev_b32 v{GT+0}, 1, v{GT+4}
v_mul_u32_u24 v{GT+0}, 18, v{GT+0}
v_add3_u32 v{GT+7}, v{GT+7}, v{GT+0}, v{GT+5}
v_add_u32 v{GT+7}, 16, v{GT+7}
v_mul_u32_u24 v{GT+7}, 144, v{GT+7}
v_add_u32 v{R_WL}, v{GT+7}, v{GT+6}
""")

GBX = [(16 + 8 * k, 20 + 8 * k) for k in range(4)] + [(68 + 8 * k, 72 + 8 * k) for k in range(2)]
DEPTH = 4
def op_reads(op, buf):
    kind, s = op
    B, A = GBX[buf]
    if kind == "m":
        out = [o_read(s, B, V_OB, V_OB2)]
        if s < 32:
            v, o = (V_WM, s * 2592) if s < 16 else (V_WM2, (s - 16) * 2592)
            out += [f"ds_read_b64_tr_b16 v[{A}:{A+1}], v{v} offset:{o}", f"ds_read_b64_tr_b16 v[{A+2}:{A+3}], v{v} offset:{o + 8 * 144}"]
        else:
            o = (s - 32) * 8 * 18 * 144
            out += [f"ds_read_b64_tr_b16 v[{A}:{A+1}], v{V_WL} offset:{o}", f"ds_read_b64_tr_b16 v[{A+2}:{A+3}], v{V_WL2} offset:{o}"]
        return out
    out = [o_read(s, B, R_OB, R_OB2)]
    if s < 32:
        v, o = (R_WM, s * 2592) if s < 16 else (R_WM2, (s - 16) * 2592)
        out += [f"ds_read_b64_tr_b16 v[{A}:{A+1}], v{v} offset:{o}", f"ds_read_b64_tr_b16 v[{A+2}:{A+3}], v{v} offset:{o + 8 * 144}"]
    else:
        o = (s // 2 - 16) * 288 * 144
        out += [f"ds_read_b64_tr_b16 v[{A}:{A+1}], v{R_WL} offset:{o}", f"ds_read_b64_tr_b16 v[{A+2}:{A+3}], v{R_WL} offset:{o + 36 * 144}"]
    return out

def gemm_ops(phase):
    ops = []
    steps = [s for s in range(32) if ((s & 7) < 4) == (phase == 0)] + (list(range(32, 36)) if phase else [])
    for k in range(0, len(steps), 2):
        ops += [("m", steps[k]), ("m", steps[k + 1]), ("r", steps[k])]
    return ops

def gemm_phase(p, phase):
    ops = gemm_ops(phase)
    nb = DEPTH + 1
    for k in range(DEPTH):
        for x in op_reads(ops[k], k): p(x)
    first = {"m": phase == 0, "r": phase == 0}
    for k, (kind, s) in enumerate(ops):
        p(f"s_waitcnt lgkmcnt({3 * min(DEPTH - 1, len(ops) - 1 - k)})")
        B, A = GBX[k % nb]
        acc, n, name = (GACC, 16, "32x32x16") if kind == "m" else (RACC, 4, "16x16x32")
        c = "0" if first[kind] else f"v[{acc}:{acc+n-1}]"
        first[kind] = False
        p(f"v_mfma_f32_{name}_bf16 v[{acc}:{acc+n-1}], v[{A}:{A+3}], v[{B}:{B+3}], {c}")
        if k + DEPTH < len(ops):
            for x in op_reads(ops[k + DEPTH], (k + DEPTH) % nb): p(x)

def out_addr(p):
    p(f"""
v_and_b32 v{V_SM}, 31, v{V_LANE}
s_and_b32 s{S_T0}, s{S_WAVE}, 1
s_lshl_b32 s{S_T0}, s{S_T0}, 5
v_add_u32 v{V_SM}, s{S_T0}, v{V_SM}
v_mul_u32_u24 v{V_SM}, 144, v{V_SM}
v_lshrrev_b32 v{GT}, 5, v{V_LANE}
v_lshl_add_u32 v{V_SM}, v{GT}, 3, v{V_SM}
s_lshr_b32 s{S_T0}, s{S_WAVE}, 1
s_mul_i32 s{S_T0}, s{S_T0}, 80
v_add_u32 v{V_SM}, s{S_T0}, v{V_SM}
v_and_b32 v{V_SR}, 15, v{V_LANE}
s_lshl_b32 s{S_T0}, s{S_WAVE}, 4
v_add_u32 v{V_SR}, s{S_T0}, v{V_SR}
v_mul_u32_u24 v{V_SR}, 144, v{V_SR}
v_bfe_u32 v{GT}, v{V_LANE}, 4, 1
v_lshl_add_u32 v{V_SR}, v{GT}, 3, v{V_SR}
""")

def out_stage(p):
    p("s_nop 7\ns_nop 1")
    p(f"v_cvt_pk_bf16_f32 v24, v{RACC}, v{RACC+1}\nv_cvt_pk_bf16_f32 v25, v{RACC+2}, v{RACC+3}")
    for r in range(8):
        p(f"v_cvt_pk_bf16_f32 v{16+r}, v{GACC+2*r}, v{GACC+2*r+1}")
        if r == 1: p(f"ds_write_b64 v{V_SR}, v[24:25] offset:64")
        if r & 1: p(f"ds_write_b64 v{V_SM}, v[{15+r}:{16+r}] offset:{16*(r >> 1)}")

OS, BU = 208, 224
S_OA, S_OB0, S_OB1 = 47, 22, 23
def out_setup(p):
    p(f"""
s_mul_i32 s{S_OA}, s{S_TT}, {64*2304}
s_mul_i32 s{S_T1}, s{S_CT}, 144
s_add_u32 s{S_OA}, s{S_OA}, s{S_T1}
""")
    for second in (0, 1):
        p(f"s_mov_b32 s{S_T3}, " + ("8" if second else f"s{S_WAVE}"))
        R = OS + 8 * second
        tile_lane(p, S_T3, R + 4, R + 5, R + 6)
        p(f"""
v_lshlrev_b32 v{R+6}, 4, v{R+6}
v_mul_u32_u24 v{R+4}, 2304, v{R+4}
v_lshl_add_u32 v{R+4}, v{R+5}, 4, v{R+4}
""")
    for last in (0, 1): bunit_setup(p, last)

def bunit_setup(p, last):
    R = BU + 8 * last
    so = S_OB1 if last else S_OB0
    a, b, c, d = R + 4, R + 5, R + 6, R + 7
    p(f"v_and_b32 v{a}, 15, v{V_LANE}\nv_lshrrev_b32 v{b}, 4, v{V_LANE}\nv_lshrrev_b32 v{c}, 2, v{a}")
    if not last:
        p(f"""
s_lshr_b32 s{S_T0}, s{S_WAVE}, 2
s_lshl_b32 s{S_T0}, s{S_T0}, 5
s_and_b32 s{S_T1}, s{S_WAVE}, 3
v_lshl_add_u32 v{c}, v{b}, 3, v{c}
v_add_u32 v{c}, s{S_T0}, v{c}
v_bfe_u32 v{d}, v{a}, 1, 1
s_lshl_b32 s{S_T3}, s{S_T1}, 1
v_add_u32 v{d}, s{S_T3}, v{d}
""")
    else:
        p(f"""
v_add_u32 v{c}, 64, v{c}
v_bfe_u32 v{d}, v{a}, 1, 1
v_lshl_add_u32 v{d}, v{b}, 1, v{d}
""")
    p(f"""
v_bfe_u32 v{R}, v{c}, 1, 1
v_bfe_u32 v{R+1}, v{c}, 3, 1
v_lshl_add_u32 v{R}, v{R+1}, 1, v{R}
v_lshlrev_b32 v{R}, 1, v{R}
v_xor_b32 v{d}, v{d}, v{R}
v_lshlrev_b32 v{c}, 7, v{c}
v_lshl_add_u32 v{c}, v{d}, 4, v{c}
v_and_b32 v{d}, 1, v{a}
v_lshl_add_u32 v{c}, v{d}, 3, v{c}
""")
    if not last:
        p(f"""
s_lshl_b32 s{S_T1}, s{S_T1}, 4
v_add_u32 v{a}, s{S_T1}, v{a}
v_mul_u32_u24 v{a}, 2304, v{a}
v_lshl_add_u32 v{a}, v{b}, 4, v{a}
s_lshl_b32 s{so}, s{S_T0}, 1
""")
    else:
        p(f"""
v_lshl_add_u32 v{a}, v{b}, 4, v{a}
v_mul_u32_u24 v{a}, 2304, v{a}
s_mov_b32 s{so}, 128
""")
    p(f"""
s_mul_i32 s{S_T1}, s{S_R}, {64*2304}
s_add_u32 s{so}, s{so}, s{S_T1}
s_mul_i32 s{S_T1}, s{S_E}, 144
s_add_u32 s{so}, s{so}, s{S_T1}
s_add_u32 s{so}, s{so}, 1152
""")

def out_store(p):
    def a_read(k): return f"ds_read_b128 v[{OS+8*k}:{OS+8*k+3}], v{OS+8*k+6}"
    def b_read(k): return f"ds_read_b64_tr_b16 v[{BU+8*k}:{BU+8*k+1}], v{BU+8*k+6} offset:{BIMG}\nds_read_b64_tr_b16 v[{BU+8*k+2}:{BU+8*k+3}], v{BU+8*k+6} offset:{BIMG + 512}"
    def a_store(k): p.vm(f"buffer_store_dwordx4 v[{OS+8*k}:{OS+8*k+3}], v{OS+8*k+4}, s[{S_OUT}:{S_OUT+3}], s{S_OA} offen", "st")
    def b_store(k): p.vm(f"buffer_store_dwordx4 v[{BU+8*k}:{BU+8*k+3}], v{BU+8*k+4}, s[{S_OUT}:{S_OUT+3}], s{S_OB1 if k else S_OB0} offen", "st")
    l6, l7, le = Prog.label("o6"), Prog.label("o7"), Prog.label("oe")
    p("s_waitcnt lgkmcnt(0)\ns_barrier")
    p(a_read(0)); p(b_read(0))
    p(f"s_cmp_eq_u32 s{S_WAVE}, 7\ns_cbranch_scc1 {l7}\ns_cmp_eq_u32 s{S_WAVE}, 6\ns_cbranch_scc1 {l6}")
    p("s_waitcnt lgkmcnt(2)"); a_store(0); p("s_waitcnt lgkmcnt(0)"); b_store(0)
    p(f"s_branch {le}\n{l6}:")
    p(b_read(1)); p("s_waitcnt lgkmcnt(4)"); a_store(0); p("s_waitcnt lgkmcnt(2)"); b_store(0); p("s_waitcnt lgkmcnt(0)"); b_store(1)
    p(f"s_branch {le}\n{l7}:")
    p(a_read(1)); p("s_waitcnt lgkmcnt(3)"); a_store(0); p("s_waitcnt lgkmcnt(1)"); b_store(0); p("s_waitcnt lgkmcnt(0)"); a_store(1)
    p(f"{le}:")

BAR0 = True
LATEB = True
def flag_init(p):
    p(f"v_mov_b32 v2, {FLG}\nv_mov_b32 v4, 0\nv_mov_b32 v5, 0\nv_mov_b32 v6, 0\nv_mov_b32 v7, 0\nds_write_b128 v2, v[4:7]\ns_waitcnt lgkmcnt(0)")

def flag_set(p):
    p(f"s_lshl_b32 s{S_T0}, s{S_W1}, 2\ns_add_u32 s{S_T0}, s{S_T0}, {FLG}\nv_mov_b32 v13, s{S_T0}\nv_mov_b32 v14, 1\nds_write_b32 v13, v14")

def flag_wait(p):
    lp, le = Prog.label("fw"), Prog.label("fx")
    p(f"""
v_mov_b32 v2, {FLG}
s_mov_b32 s{S_T0}, {RETRY * 16}
{lp}:
ds_read_b128 v[4:7], v2
s_sub_u32 s{S_T0}, s{S_T0}, 1
s_cbranch_scc1 {le}
s_waitcnt lgkmcnt(0)
v_and_b32 v4, v4, v5
v_and_b32 v6, v6, v7
v_and_b32 v4, v4, v6
v_cmp_eq_u32 vcc, 1, v4
s_cbranch_vccz {lp}
{le}:
s_waitcnt lgkmcnt(0)
""")

def g0_setup(p):
    gemm_setup(p)
    out_addr(p)
    out_setup(p)

def gen_k23(on=False):
    assert k3.BIMG == BIMG and (k3.S_WAVE, k3.S_E, k3.S_R, k3.S_T0, k3.S_T1, k3.S_T3, k3.S_OUT, k3.V_LANE) == (S_WAVE, S_E, S_R, S_T0, S_T1, S_T3, S_OUT, V_LANE)
    assert (k2.V_LANE, k3.S_HI) == (V_LANE, S_HI)
    p = Prog()
    prologue(p, on)
    p(f"s_cmp_ge_u32 s{S_WAVE}, 4\ns_cbranch_scc1 L2_g1")
    p(f"s_cmp_ge_u32 s{S_R}, 24\ns_cbranch_scc1 L2_red\ns_cmp_eq_u32 s{S_WAVE}, 3\ns_cbranch_scc1 L2_w3")
    conv_loads(p)
    p("s_barrier")
    stamp(p, 1, on)
    conv_setup(p)
    g0_setup(p)
    p("s_waitcnt vmcnt(0) lgkmcnt(0)")
    stamp(p, 2, on)
    conv_main(p)
    stamp(p, 3, on)
    p("s_barrier")
    stamp(p, 4, on)
    conv_finish(p)
    p("s_branch L2_g0")
    p("L2_w3:")
    flag_init(p)
    p("s_barrier")
    g0_setup(p)
    p("s_branch L2_wo")
    p("L2_red:")
    p.vmq = []
    p(f"s_cmp_lg_u32 s{S_WAVE}, 3\ns_cbranch_scc1 L2_red1")
    flag_init(p)
    p("L2_red1:")
    reduce_part(p)
    stamp(p, 1, on)
    g0_setup(p)
    p(f"s_cmp_eq_u32 s{S_WAVE}, 3\ns_cbranch_scc1 L2_wo\ns_barrier\ns_branch L2_g0")
    p("L2_wo:")
    flag_wait(p)
    stamp(p, 2, on)
    wo_loads(p)
    stamp(p, 3, on)
    p("s_waitcnt vmcnt(0)")
    p("s_barrier")
    stamp(p, 4, on)
    p("L2_g0:")
    p.vmq = []
    stamp(p, 5, on)
    gemm_phase(p, 0)
    stamp(p, 6, on)
    p("s_barrier")
    stamp(p, 7, on)
    gemm_phase(p, 1)
    stamp(p, 8, on)
    out_stage(p)
    p("s_branch L2_st")
    p("L2_g1:")
    p.vmq = []
    slow = Prog()
    p(f"s_sub_u32 s{S_W1}, s{S_WAVE}, 4")
    if "late" not in EXP: ostage_setup(p)
    p("s_barrier")
    if "late" in EXP: ostage_setup(p)
    for hl in range(8):
        if hl == KVPOS:
            for h in range(4): kvz_loads(p, h)
            if "f1" in EXP: flag_set(p)
        phiq_loads(p, hl)
    if KVPOS >= 8:
        for h in range(4): kvz_loads(p, h)
    if "f1" not in EXP or KVPOS >= 8: flag_set(p)
    stamp(p, 1, on)
    if "noprio" not in EXP: p("s_setprio 2")
    ostage(p, on, slow)
    p("s_setprio 0")
    stamp(p, 5, on)
    p("s_barrier")
    stamp(p, 7, on)
    bfinal_setup(p, 0)
    bfinal_loads(p)
    bfinal_setup(p, 1)
    out_setup(p)
    stamp(p, 6, on)
    bfinal_check(p)
    bfinal_stage(p)
    stamp(p, 8, on)
    p("L2_st:")
    p.vmq = []
    out_store(p)
    stamp(p, 9, on)
    if on: p("s_waitcnt vmcnt(0)")
    stamp(p, 10, on)
    stamp_dump(p, on)
    p("s_endpgm")
    return p.text() + slow.text() + "L2_end:\n"

if __name__ == "__main__":
    import k1, sys
    on = "nostamp" not in sys.argv
    tag = ""
    for a in sys.argv[1:]:
        if a.startswith("EXP="): EXP = a[4:]; tag += EXP
        if a.startswith("KVPOS="): KVPOS = int(a[6:]); tag += f"_kv{KVPOS}"
    k1.FILL = True
    ks = [dict(name="k1_kernel", body=k1.gen_a1(st_on=on), grid=256, block=768, lds=k1.LDS_END, vgpr=k1.NVGPR),
          dict(name="k23_kernel", body=gen_k23(on), grid=256, block=512, lds=LDS23, vgpr=NV)]
    open(f"kz{tag}.s" if on else f"kzf{tag}.s", "w").write(program(ks))
```
